```python
import torch

def _softmax(x, axis=-1):
    return torch.softmax(x, dim=axis)
def _gelu(x):
    return torch.nn.functional.gelu(x, approximate="tanh")
def _silu(x):
    return torch.nn.functional.silu(x)
def _sigmoid(x):
    return torch.sigmoid(x)
def _layernorm(x, axis=-1, eps=1e-5):
    m = x.mean(dim=axis, keepdim=True)
    v = x.var(dim=axis, keepdim=True, unbiased=False)
    return (x - m) / torch.sqrt(v + eps)
def _scatter_add(tgt, idx, src, axis=0):
    return tgt.clone().index_add_(axis, idx, src)
def _segment_sum(src, seg, n):
    out = torch.zeros((n,) + src.shape[1:], dtype=src.dtype)
    return out.index_add_(0, seg, src)
def _pad(x, pw):
    flat = tuple(v for pair in reversed(pw) for v in pair)
    return torch.nn.functional.pad(x, flat)

kernel_name = 'gated_mix__mha_block_cached__swiglu_ffn__decode'

def setup_inputs():

    _w = (lambda a: (lambda t: t.to(torch.bfloat16) if t.is_floating_point() else t)(torch.as_tensor(a)))
    def _A_setup():
        B, Sq, D = 4, 1, 640
        H, Sk, Dh = 32, 4096, 128
        return {
            "x": _w((lambda *s: torch.randn(*s, dtype=torch.bfloat16) * 0.05)(B, Sq, D)),
            "k_cache": _w((lambda *s: torch.randn(*s, dtype=torch.bfloat16) * 6.4)(B, H, Sk, Dh)),
            "v_cache": _w((lambda *s: torch.randn(*s, dtype=torch.bfloat16) * 0.2)(B, H, Sk, Dh)),
            "wq": _w((lambda *s: torch.randn(*s, dtype=torch.bfloat16) * 6.4)(D, H * Dh) * (D ** -0.5)),
            "wo": _w((lambda *s: torch.randn(*s, dtype=torch.bfloat16) * 0.2)(H * Dh, D) * ((H * Dh) ** -0.5)),
        }
    _A_in = _A_setup()

    def _B_setup():
        B, S, D, F = 4, 1, 640, 1728
        return {
            "x": _w((lambda *s: torch.randn(*s, dtype=torch.bfloat16) * 0.05)(B, S, D)),
            "w_gate": _w((lambda *s: torch.randn(*s, dtype=torch.bfloat16) * 0.05)(D, F)),
            "w_up": _w((lambda *s: torch.randn(*s, dtype=torch.bfloat16) * 0.05)(D, F)),
            "w_down": _w((lambda *s: torch.randn(*s, dtype=torch.bfloat16) * 0.05)(F, D)),
        }
    _B_in = _B_setup()

    return {
        "A_x": _A_in["x"],
        "A_k_cache": _A_in["k_cache"],
        "A_v_cache": _A_in["v_cache"],
        "A_wq": _A_in["wq"],
        "A_wo": _A_in["wo"],
        "B_x": _B_in["x"],
        "B_w_gate": _B_in["w_gate"],
        "B_w_up": _B_in["w_up"],
        "B_w_down": _B_in["w_down"],
        "gate_w": _w((lambda *s: torch.randn(*s, dtype=torch.bfloat16) * 0.05)(640) * 16.0),
    }

def reference(A_x, A_k_cache, A_v_cache, A_wq, A_wo, B_x, B_w_gate, B_w_up, B_w_down, gate_w):
    def _A_ref(x, k_cache, v_cache, wq, wo):
        B, Sq, D = x.shape
        H, Dh = 32, 128
        q = (lambda x, *d: x.permute(*d))((x @ wq).reshape(B, Sq, H, Dh), 0, 2, 1, 3)
        scores = torch.einsum("bhqd,bhkd->bhqk", q, k_cache) * (Dh ** -0.5)
        p = _softmax(scores, axis=-1)
        o = torch.einsum("bhqk,bhkd->bhqd", p, v_cache)
        return (lambda x, *d: x.permute(*d))(o, 0, 2, 1, 3).reshape(B, Sq, H * Dh) @ wo

    def _B_ref(x, w_gate, w_up, w_down):
        g = _silu(x @ w_gate)
        u = x @ w_up
        return (g * u) @ w_down

    x = A_x
    g = _sigmoid((x * gate_w).sum(-1, keepdims=True))
    a = _A_ref(x, A_k_cache, A_v_cache, A_wq, A_wo)
    b = _B_ref(x, B_w_gate, B_w_up, B_w_down)
    return g * a + (1 - g) * b
```

```python
import re

TRANS = ('v_exp_f32','v_log_f32','v_rcp_f32','v_rsq_f32','v_sqrt_f32','v_sin_f32','v_cos_f32')
def regs_of(tok):
    tok = tok.strip()
    m = re.fullmatch(r'-?\|?([vs])(\d+)\|?', tok)
    if m: return [(m.group(1), int(m.group(2)))]
    m = re.fullmatch(r'([vs])\[(\d+):(\d+)\]', tok)
    if m: return [(m.group(1), i) for i in range(int(m.group(2)), int(m.group(3))+1)]
    if tok == 'vcc': return [('s','vcc_lo'),('s','vcc_hi')]
    if tok == 'exec': return [('s','exec_lo'),('s','exec_hi')]
    if tok in ('vcc_lo','vcc_hi','exec_lo','exec_hi','m0'): return [('s',tok)]
    return []

class Ins:
    pass

def parse(text):
    t = text.split(';')[0].strip()
    I = Ins(); I.text = t
    parts = t.split(None, 1)
    op = parts[0]; I.op = op
    rest = parts[1] if len(parts) > 1 else ''
    ops = []; depth = 0; cur = ''
    for ch in rest:
        if ch == '[': depth += 1
        if ch == ']': depth -= 1
        if ch == ',' and depth == 0: ops.append(cur.strip()); cur = ''
        else: cur += ch
    if cur.strip(): ops.append(cur.strip())
    mods = ''
    if ops:
        lp = ops[-1].split(None, 1)
        ops[-1] = lp[0]
        mods = lp[1] if len(lp) > 1 else ''
    I.ops = ops; I.mods = mods
    I.valu = op.startswith('v_')
    I.salu = op.startswith('s_') and not op.startswith(('s_load','s_waitcnt','s_nop','s_barrier','s_cbranch','s_branch','s_endpgm','s_sleep','s_memtime','s_memrealtime','s_setprio'))
    I.vmem = op.startswith(('buffer_','global_'))
    I.ds = op.startswith('ds_')
    I.dpp = any(k in mods for k in ('row_','quad_perm','wave_'))
    base = op.replace('_dpp','').replace('_e64','').replace('_e32','')
    I.base = base
    I.trans = base in TRANS
    I.dot = base.startswith('v_dot')
    I.perml = base.startswith('v_permlane')
    I.rdlane = base in ('v_readlane_b32','v_readfirstlane_b32')
    W = []; R = []
    allr = [regs_of(o) for o in ops]
    I.srcC = []
    if I.valu:
        if base.startswith('v_cmp'):
            W = allr[0]; R = sum(allr[1:], [])
        elif I.perml and 'swap' in base:
            W = allr[0] + allr[1]; R = W[:]
        elif base in ('v_add_co_u32','v_sub_co_u32','v_addc_co_u32','v_subb_co_u32'):
            W = allr[0] + allr[1]; R = sum(allr[2:], [])
        else:
            W = allr[0]; R = sum(allr[1:], [])
            if base in ('v_fmac_f32','v_dot2c_f32_bf16','v_pk_fmac_f16','v_writelane_b32'):
                R = R + allr[0]
            if base == 'v_dot2c_f32_bf16': I.srcC = allr[0]
            if base == 'v_dot2_f32_bf16': I.srcC = allr[3]
            if base == 'v_cndmask_b32' and len(ops) == 3: R = R + regs_of('vcc')
            if I.dpp: R = R + allr[0]
    elif I.vmem:
        if 'load' in base:
            if 'lds' in mods.split(): R = sum(allr, [])
            else: W = allr[0]; R = sum(allr[1:], [])
        elif 'store' in base:
            R = sum(allr, [])
        elif 'atomic' in base:
            R = sum(allr, [])
            if 'sc0' in mods.split(): W = allr[0] if base.startswith('buffer') else allr[0]
    elif I.ds:
        if base.startswith(('ds_read','ds_bpermute','ds_permute','ds_swizzle')) or '_rtn' in base:
            W = allr[0]; R = sum(allr[1:], [])
        else:
            R = sum(allr, [])
    elif op.startswith('s_load'):
        W = allr[0]; R = sum(allr[1:], [])
    elif I.salu:
        if base.startswith('s_cmp'):
            R = sum(allr, [])
        else:
            W = allr[0] if allr else []; R = sum(allr[1:], [])
            if 'saveexec' in base: W = W + regs_of('exec'); R = R + regs_of('exec')
    I.W = set(W); I.R = set(R)
    I.widestore = I.vmem and 'store' in base and (base.endswith('x4') or base.endswith('x3'))
    if I.widestore:
        di = 0 if base.startswith('buffer') else 1
        I.sdata = set(allr[di])
    return I

class Asm:
    def __init__(self):
        self.lines = []
        self.hist = []
        self.vm = []
        self.vm_opt = set()
        self.nops = 0
        self.pending = {}
        self.cnt = {}
    def raw(self, s): self.lines.append(s)
    def comment(self, s): self.lines.append('    ; ' + s)
    def _need(self, I, hist):
        need = 0; d = 0
        for P, st in reversed(hist):
            if d >= 6: break
            if P is not None:
                req = 0
                vW = {r for r in P.W if r[0] == 'v'}
                sW = {r for r in P.W if r[0] == 's'}
                if P.valu:
                    if I.valu and I.dpp and (vW & I.R): req = max(req, 2)
                    if P.dot:
                        ov = vW & (I.R | I.W)
                        if ov:
                            same = (I.base == P.base)
                            onlyC = same and (vW & I.R) <= set(I.srcC) and (vW & I.W) <= set(I.srcC) | (set(I.ops and regs_of(I.ops[0])))
                            srcAB = set()
                            if I.valu:
                                for o in I.ops[1:3]: srcAB |= set(regs_of(o))
                            if same and not (vW & srcAB) and (vW & set(I.srcC)) == (vW & I.R): req = max(req, 0)
                            else: req = max(req, 3)
                    if P.trans and I.valu and not I.trans and (vW & I.R): req = max(req, 1)
                    if P.trans and (I.vmem or I.ds) and (vW & I.R): req = max(req, 1)
                    if I.rdlane and (vW & I.R): req = max(req, 1)
                    if I.perml and (vW & I.R): req = max(req, 2)
                    if I.valu and (sW & I.R): req = max(req, 2)
                    if I.vmem and (sW & I.R): req = max(req, 5)
                    if I.base in ('v_readlane_b32','v_writelane_b32') and (sW & I.R): req = max(req, 4)
                if getattr(P, 'widestore', False):
                    if P.sdata & I.W: req = max(req, 2)
                if req > d: need = max(need, req - d)
            d += st
        return need
    def emit(self, text):
        I = parse(text)
        if I.op == 's_nop':
            n = int(I.ops[0]) + 1
            self.lines.append('    ' + text); self.hist.append((None, n)); return
        need = self._need(I, self.hist)
        if need > 0:
            self.lines.append(f'    s_nop {need-1}'); self.hist.append((None, need)); self.nops += 1
        self.lines.append('    ' + text)
        self.hist.append((I, 1))
        self.hist = self.hist[-12:]
        if I.op.startswith(('s_cbranch','s_branch')):
            self.pending.setdefault(I.ops[0], []).append(list(self.hist))
        return I
    def __call__(self, text): return self.emit(text)
    def label(self, name, loop=False):
        snaps = self.pending.pop(name, [])
        self.lines.append(name + ':')
        merged = list(self.hist)
        self._alt = snaps
        if snaps or loop:
            risky = loop
            for h in snaps + [merged]:
                d = 0
                for P, st in reversed(h):
                    if d >= 6: break
                    if P is not None and (P.valu or getattr(P,'widestore',False)): risky = True
                    d += st
            if risky:
                self.lines.append('    s_nop 4'); self.nops += 1
            self.hist = [(None, 6)]
    def barrier_hist(self): self.hist = [(None, 6)]
    def vmem(self, text, tag=None, optional=False):
        self.emit(text)
        idx = len(self.vm)
        self.vm.append((tag, optional))
        return idx
    def wait_vm(self, idx, extra=''):
        if idx <= getattr(self, 'done', -1): return None
        self.done = idx
        n = sum(1 for k in range(idx + 1, len(self.vm)) if not self.vm[k][1])
        assert n <= 63, n
        self.emit(f's_waitcnt vmcnt({n})' + extra)
        return n
    def text(self): return '\n'.join(self.lines) + '\n'
```

```python
import sys
from asmlib import Asm

NAME = 'gated_mix__mha_block_cached__swiglu_ffn__decode'
HEADER = open('cdna_kernels/' + NAME + '.s.ref').read().split('; Override launch')[0]

OPT = dict(POL_KV='nt', POL_W='nt', POL_WO='nt', PREFETCH_CODE=True, STAMPS=False, SPIN_LIMIT=1 << 17)
for a in sys.argv[2:]:
    k, v = a.split('=')
    OPT[k] = v if k.startswith('POL') else int(v)
def pol(p): return (' ' + p) if p else ''

QBUF = 0x1000; HBUF = 0x11000; MLBUF = 0x18000; PBUF = 0x20000; WS_SIZE = 0x160000
STAMPBUF = 0x200000
L_P0Q = 0; L_P0F = 2048; L_OB = 4096; OB_STRIDE = 576; L_RB = 9216; RB_STRIDE = 2560
LDS_BYTES = 83968

S_X, S_K, S_V, S_WQ, S_WO, S_WG, S_WU, S_WD, S_GW, S_OUT, S_DBG, S_WS = 4, 6, 8, 10, 12, 16, 18, 20, 22, 24, 26, 28
D_K, D_V, D_WQ, D_X, D_WO, D_WD, D_GW, D_WS, D_OUT = 32, 36, 40, 44, 48, 52, 56, 60, 64
sW, sH, sB, sBS, sS, sJ, sSIG, sOFF = 68, 69, 70, 71, 72, 73, 74, 75
sTAG = 76
sMASKHI, sSELLO, sSELHI = 78, 79, 80
sR = 81
sQM = [None, 82, 84, 86]
sO = 88
D_G, D_U = 88, 92
sT0, sT1, sT2, sT3 = 96, 97, 98, 99
sSPIN = 100
sWOB = 30
sPC = 14
vTID, vLANE, vKOFF, vL16, vL4, vDUM = 0, 1, 2, 3, 4, 5
RING = 16
WOX = 80; WOD = 144; WOSP = 160
ACC = 164; A = 174; TMP = 182
G0 = 198; G1 = 202
S = 206; T = 210; U0, U1, WW = 214, 215, 216
ML = 218; HG = 222; PUB = 226
vG, vOMG, vM, vLS = 230, 231, 232, 233
vt = [234 + i for i in range(14)]
WQr = 80; WFr = 90; XB = [100, 106, 112, 118]; P0A = 124; XG = 140; GWr = 146
vXOFF, vWQOFF, vFOFF, vGOFF, vP0W = 6, 7, 8, 9, 10
vQADDR, vMLADDR = 11, 12

a = Asm()
E = a.emit
LOG2E = 0x3fb8aa3b

def srd(d, lo, hi, size, add=None):
    if add is None:
        E(f's_mov_b32 s{d}, s{lo}'); E(f's_and_b32 s{d+1}, s{hi}, 0xffff')
    else:
        E(f's_add_u32 s{d}, s{lo}, s{add}'); E(f's_addc_u32 s{d+1}, s{hi}, 0'); E(f's_and_b32 s{d+1}, s{d+1}, 0xffff')
    if isinstance(size, int): E(f's_mov_b32 s{d+2}, {size}')
    else: E(size)
    E(f's_mov_b32 s{d+3}, 0x20000')

def bf16r(dst, src, tmp):
    E(f'v_cvt_pk_bf16_f32 v{tmp}, v{src}, v{src}')
    E(f'v_lshlrev_b32 v{dst}, 16, v{tmp}')

def row_reduce(op, v):
    for r in (8, 4, 2, 1):
        E(f'{op}_dpp v{v}, v{v}, v{v} row_ror:{r} row_mask:0xf bank_mask:0xf')

def wave_reduce(op, v, t):
    row_reduce(op, v)
    E(f'v_mov_b32 v{t}, v{v}'); E(f'v_permlane16_swap_b32 v{t}, v{v}'); E(f'{op} v{v}, v{v}, v{t}')
    E(f'v_mov_b32 v{t}, v{v}'); E(f'v_permlane32_swap_b32 v{t}, v{v}'); E(f'{op} v{v}, v{v}, v{t}')

slow_paths = []
def poll_check(name, tagregs, reissue):
    def cmp():
        E(f'v_cmp_eq_u64 vcc, s[{sTAG}:{sTAG+1}], v[{tagregs[0]}:{tagregs[0]+1}]')
        for t in tagregs[1:]:
            E(f'v_cmp_eq_u64 s[{sT0}:{sT0+1}], s[{sTAG}:{sTAG+1}], v[{t}:{t+1}]')
            E(f's_and_b64 vcc, vcc, s[{sT0}:{sT0+1}]')
        E('s_cmp_eq_u64 vcc, -1')
    cmp()
    E(f's_cbranch_scc0 L_SLOW_{name}')
    a.label(f'L_OK_{name}');
    def slow():
        a.raw(f'L_SLOW_{name}:'); a.barrier_hist()
        E(f's_mov_b32 s{sSPIN}, 0')
        a.raw(f'L_SLOWLOOP_{name}:'); a.barrier_hist()
        E(f's_add_u32 s{sSPIN}, s{sSPIN}, 1')
        E(f's_cmp_gt_u32 s{sSPIN}, {OPT["SPIN_LIMIT"]}')
        E(f's_cbranch_scc1 L_GIVEUP_{name}')
        E('s_sleep 1')
        reissue()
        E('s_waitcnt vmcnt(0)')
        cmp()
        E(f's_cbranch_scc0 L_SLOWLOOP_{name}')
        a.raw(f'L_GIVEUP_{name}:'); a.barrier_hist()
        E('s_nop 4')
        E(f's_branch L_OK_{name}')
    slow_paths.append(slow)

def stamp(i):
    if not OPT['STAMPS']: return
    E(f's_memrealtime s[{sT2}:{sT3}]'); E('s_waitcnt lgkmcnt(0)')
    E(f'v_mov_b32 v{vt[12]}, s{sT2}')
    E(f's_lshl_b32 s{sT2}, s2, 3'); E(f's_add_u32 s{sT2}, s{sT2}, s{sW}'); E(f's_lshl_b32 s{sT2}, s{sT2}, 6')
    E(f's_add_u32 s{sT2}, s{sT2}, {STAMPBUF + 4*i}'); E(f'v_mov_b32 v{vt[13]}, s{sT2}')
    E(f'global_store_dword v{vt[13]}, v{vt[12]}, s[{S_WS}:{S_WS+1}]')
    a.vm.append(('stamp', True))

a.raw(HEADER.rstrip())
a.raw('; Override launch geometry by editing the next line.')
a.raw(f'; @launch grid=(256,1,1) block=(512,1,1) lds={LDS_BYTES}')
a.raw('.amdgcn_target "amdgcn-amd-amdhsa--gfx950"')
a.raw('.text'); a.raw(f'.globl {NAME}_kernel'); a.raw('.p2align 8'); a.raw(f'.type {NAME}_kernel,@function')
a.raw(f'{NAME}_kernel:')
a.raw('L_ENTRY:')
E('s_cmp_ge_u32 s2, 256')
E('s_cbranch_scc1 L_END')
E('s_load_dwordx16 s[4:19], s[0:1], 0')
E('s_load_dwordx8 s[20:27], s[0:1], 64')
E('s_load_dwordx2 s[28:29], s[0:1], 96')
E(f'v_and_b32 v{vLANE}, 63, v0')
E(f'v_lshrrev_b32 v{vt[0]}, 6, v0')
if OPT['PREFETCH_CODE']:
    E(f's_getpc_b64 s[{sT2}:{sT3}]')
    a.raw('L_PCREF:')
    E(f'v_lshlrev_b32 v{vt[1]}, 7, v0')
    E(f'v_min_u32 v{vt[1]}, L_CODE_END-L_PCREF-4, v{vt[1]}')
    a.vmem(f'global_load_dword v{vDUM}, v{vt[1]}, s[{sT2}:{sT3}]', 'codepf')
E(f'v_readfirstlane_b32 s{sW}, v{vt[0]}')
E(f's_and_b32 s{sT0}, s2, 7')
E(f's_lshr_b32 s{sR}, s2, 3')
E(f's_and_b32 s{sT1}, s{sR}, 3')
E(f's_lshl_b32 s{sH}, s{sT0}, 2'); E(f's_add_u32 s{sH}, s{sH}, s{sT1}')
E(f's_lshr_b32 s{sBS}, s{sR}, 2'); E(f's_lshr_b32 s{sB}, s{sBS}, 1'); E(f's_and_b32 s{sS}, s{sBS}, 1')
E(f's_lshl_b32 s{sJ}, s{sH}, 1'); E(f's_add_u32 s{sJ}, s{sJ}, s{sS}')
E(f's_mul_i32 s{sSIG}, s{sT0}, 27'); E(f's_add_u32 s{sSIG}, s{sSIG}, s{sR}'); E(f's_min_u32 s{sSIG}, s{sSIG}, 215')
E(f's_mov_b32 s{sMASKHI}, 0xffff0000'); E(f's_mov_b32 s{sSELLO}, 0x05040100'); E(f's_mov_b32 s{sSELHI}, 0x07060302')
g_, cp_, r0_ = vt[1], vt[2], vt[3]
E(f'v_lshrrev_b32 v{g_}, 3, v{vLANE}'); E(f'v_and_b32 v{cp_}, 7, v{vLANE}')
E(f'v_mul_u32_u24 v{r0_}, 10, v{g_}'); E(f's_mul_i32 s{sT1}, s{sW}, 80'); E(f'v_add_u32 v{r0_}, s{sT1}, v{r0_}')
E(f'v_lshlrev_b32 v{vXOFF}, 1, v{r0_}')
E(f'v_lshlrev_b32 v{vWQOFF}, 13, v{r0_}'); E(f'v_lshl_add_u32 v{vWQOFF}, v{cp_}, 2, v{vWQOFF}')
E(f'v_mul_u32_u24 v{vFOFF}, 3456, v{r0_}'); E(f'v_and_b32 v{vt[4]}, 3, v{cp_}'); E(f'v_lshl_add_u32 v{vFOFF}, v{vt[4]}, 2, v{vFOFF}')
E(f'v_lshlrev_b32 v{vL16}, 4, v{vLANE}'); E(f'v_lshlrev_b32 v{vL4}, 2, v{vLANE}')
E(f's_lshl_b32 s{sT1}, s{sW}, 12'); E(f'v_add_u32 v{vKOFF}, s{sT1}, v{vL16}')
E(f'v_mul_u32_u24 v{vGOFF}, 20, v{vLANE}')
E(f's_lshl_b32 s{sT0}, s{sH}, 8'); E(f's_lshl_b32 s{sT1}, s{sBS}, 5'); E(f's_add_u32 s{sT0}, s{sT0}, s{sT1}')
E(f's_lshl_b32 s{sT1}, s{sB}, 5'); E(f's_add_u32 s{sT1}, s{sT1}, s{sH}'); E(f's_lshl_b32 s{sT1}, s{sT1}, 20')
E(f's_lshl_b32 s{sT2 if not OPT["PREFETCH_CODE"] else sOFF}, s{sS}, 19')
E(f's_add_u32 s{sT1}, s{sT1}, s{sT2 if not OPT["PREFETCH_CODE"] else sOFF}')
E('s_waitcnt lgkmcnt(0)')
srd(D_WQ, S_WQ, S_WQ+1, f's_sub_u32 s{D_WQ+2}, 5242880, s{sT0}', add=sT0)
srd(D_X, S_X, S_X+1, 5120)
wq_ops = []
for i in range(10):
    if i == 0: so = '0'
    else: E(f's_mov_b32 s{sOFF}, {i*8192}'); so = f's{sOFF}'
    wq_ops.append(a.vmem(f'buffer_load_dword v{WQr+i}, v{vWQOFF}, s[{D_WQ}:{D_WQ+3}], {so} offen{pol(OPT["POL_W"])}', 'wq'))
x_ops = []
for b in range(4):
    x_ops.append(a.vmem(f'buffer_load_dwordx4 v[{XB[b]}:{XB[b]+3}], v{vXOFF}, s[{D_X}:{D_X+3}], 0 offen offset:{b*1280}', 'x'))
    x_ops.append(a.vmem(f'buffer_load_dword v{XB[b]+4}, v{vXOFF}, s[{D_X}:{D_X+3}], 0 offen offset:{b*1280+16}', 'x'))
E(f's_load_dwordx2 s[{sTAG}:{sTAG+1}], s[{S_WS}:{S_WS+1}], 0')
srd(D_K, S_K, S_K+1, 524288, add=sT1)
srd(D_V, S_V, S_V+1, 524288, add=sT1)
E(f's_lshl_b32 s{sT0}, s{sSIG}, 4')
srd(D_G, S_WG, S_WG+1, f's_sub_u32 s{D_G+2}, 2211840, s{sT0}', add=sT0)
srd(D_U, S_WU, S_WU+1, f's_sub_u32 s{D_U+2}, 2211840, s{sT0}', add=sT0)
f_ops = []
for (d, mask) in ((D_G, 0x0f0f0f0f), (D_U, 0xf0f0f0f0)):
    E(f's_mov_b32 exec_lo, {mask:#x}'); E(f's_mov_b32 exec_hi, {mask:#x}')
    for i in range(10):
        if i == 0: so = '0'; off = ''
        elif i == 1: so = '0'; off = ' offset:3456'
        else: E(f's_mov_b32 s{sOFF}, {i*3456}'); so = f's{sOFF}'; off = ''
        f_ops.append(a.vmem(f'buffer_load_dword v{WFr+i}, v{vFOFF}, s[{d}:{d+3}], {so} offen{off}{pol(OPT["POL_W"])}', 'ffn'))
E('s_mov_b64 exec, -1')

ring_ops = {}
def issue_chunk(u):
    d = D_K if u < 16 else D_V
    c = u % 16
    if c == 0: so = '0'
    else: E(f's_mov_b32 s{sOFF}, {c*32768}'); so = f's{sOFF}'
    for l in range(4):
        r = RING + (u % 4)*16 + l*4
        off = f' offset:{l*1024}' if l else ''
        ring_ops[(u, l)] = a.vmem(f'buffer_load_dwordx4 v[{r}:{r+3}], v{vKOFF}, s[{d}:{d+3}], {so} offen{off}{pol(OPT["POL_KV"])}', f'ring{u}')
issue_chunk(0)
srd(D_GW, S_GW, S_GW+1, 1280)
E(f's_mul_i32 s{sT0}, s{sB}, 1280')
g_ops = []
g_ops.append(a.vmem(f'buffer_load_dwordx4 v[{XG}:{XG+3}], v{vGOFF}, s[{D_X}:{D_X+3}], s{sT0} offen', 'xg'))
g_ops.append(a.vmem(f'buffer_load_dword v{XG+4}, v{vGOFF}, s[{D_X}:{D_X+3}], s{sT0} offen offset:16', 'xg'))
g_ops.append(a.vmem(f'buffer_load_dwordx4 v[{GWr}:{GWr+3}], v{vGOFF}, s[{D_GW}:{D_GW+3}], 0 offen', 'gw'))
g_ops.append(a.vmem(f'buffer_load_dword v{GWr+4}, v{vGOFF}, s[{D_GW}:{D_GW+3}], 0 offen offset:16', 'gw'))
srd(D_WS, S_WS, S_WS+1, WS_SIZE)
srd(D_OUT, S_OUT, S_OUT+1, 5120)
srd(D_WD, S_WD, S_WD+1, 2211840)
E(f's_mul_i32 s{sT0}, s{sH}, {128*1280}')
srd(D_WO, S_WO, S_WO+1, 163840, add=sT0)
E(f's_mul_i32 s{sWOB}, s{sW}, {16*1280}')
for cc in (1, 2, 3):
    m = (0x11111111 << cc) & 0xffffffff
    E(f's_mov_b32 s{sQM[cc]}, {m:#x}'); E(f's_mov_b32 s{sQM[cc]+1}, {m:#x}')
E(f'v_and_b32 v{vt[0]}, 0x30, v{vLANE}'); E(f'v_and_b32 v{vt[1]}, 7, v{vLANE}'); E(f'v_lshl_add_u32 v{vt[0]}, v{vt[1]}, 1, v{vt[0]}')
E(f'v_bfe_u32 v{vt[1]}, v{vLANE}, 3, 1'); E(f'v_add_u32 v{vt[0]}, v{vt[0]}, v{vt[1]}'); E(f'v_lshlrev_b32 v{vt[0]}, 2, v{vt[0]}')
E(f's_lshl_b32 s{sT0}, s{sW}, 8'); E(f'v_add_u32 v{vP0W}, s{sT0}, v{vt[0]}')
E(f'v_and_b32 v{vt[0]}, 15, v{vLANE}'); E(f'v_lshlrev_b32 v{vt[0]}, 5, v{vt[0]}')
E(f's_lshl_b32 s{sT0}, s{sH}, 2'); E(f's_add_u32 s{sT0}, s{sT0}, s{sB}'); E(f's_lshl_b32 s{sT0}, s{sT0}, 9'); E(f's_add_u32 s{sT0}, s{sT0}, {QBUF}')
E(f'v_add_u32 v{vQADDR}, s{sT0}, v{vt[0]}')
E(f'v_and_b32 v{vt[0]}, 15, v{vLANE}'); E(f'v_lshlrev_b32 v{vt[0]}, 4, v{vt[0]}')
E(f's_lshl_b32 s{sT0}, s{sB}, 5'); E(f's_add_u32 s{sT0}, s{sT0}, s{sH}'); E(f's_lshl_b32 s{sT0}, s{sT0}, 8'); E(f's_add_u32 s{sT0}, s{sT0}, {MLBUF}')
E(f'v_add_u32 v{vMLADDR}, s{sT0}, v{vt[0]}')
stamp(0)

def matvec16(Wr, ldsbase):
    lo, hi = vt[0], vt[1]
    for k in range(5):
        l, h = (vt[0], vt[1]) if k % 2 == 0 else (vt[2], vt[3])
        E(f'v_perm_b32 v{l}, v{Wr+2*k+1}, v{Wr+2*k}, s{sSELLO}')
        E(f'v_perm_b32 v{h}, v{Wr+2*k+1}, v{Wr+2*k}, s{sSELHI}')
        for b in range(4):
            for par, src in ((0, l), (1, h)):
                acc = P0A + 2*b + par
                c = '0' if k == 0 else f'v{acc}'
                E(f'v_dot2_f32_bf16 v{acc}, v{src}, v{XB[b]+k}, {c}')
    for par in (0, 1):
        for b in (0, 1):
            E(f'v_permlane32_swap_b32 v{P0A+2*b+par}, v{P0A+2*(b+2)+par}')
    for par in (0, 1):
        for b in (0, 1):
            E(f'v_add_f32 v{P0A+2*b+par}, v{P0A+2*b+par}, v{P0A+2*(b+2)+par}')
    for par in (0, 1):
        E(f'v_permlane16_swap_b32 v{P0A+par}, v{P0A+2+par}')
    for par in (0, 1):
        E(f'v_add_f32 v{P0A+par}, v{P0A+par}, v{P0A+2+par}')
    E(f'v_add_f32_dpp v{vt[4]}, v{P0A}, v{P0A} row_ror:8 row_mask:0xf bank_mask:0x3')
    E(f'v_add_f32_dpp v{vt[4]}, v{P0A+1}, v{P0A+1} row_ror:8 row_mask:0xf bank_mask:0xc')
    E(f'ds_write_b32 v{vP0W}, v{vt[4]} offset:{ldsbase}')

def gather8(ldsbase, dst):
    t = [vt[0], vt[2], vt[4], vt[6]]
    for i in range(4):
        E(f'ds_read2st64_b32 v[{t[i]}:{t[i]+1}], v{vL4} offset0:{ldsbase//256 + 2*i} offset1:{ldsbase//256 + 2*i + 1}')
    E('s_waitcnt lgkmcnt(0)')
    for i in range(4): E(f'v_add_f32 v{t[i]}, v{t[i]}, v{t[i]+1}')
    E(f'v_add_f32 v{t[0]}, v{t[0]}, v{t[1]}'); E(f'v_add_f32 v{t[2]}, v{t[2]}, v{t[3]}')
    E(f'v_add_f32 v{dst}, v{t[0]}, v{t[2]}')

def pack_quad(src):
    E(f'v_mov_b32_dpp v{vt[9]}, v{src} quad_perm:[1,1,3,3] row_mask:0xf bank_mask:0xf')
    E(f'v_cvt_pk_bf16_f32 v{PUB}, v{src}, v{vt[9]}')
    E(f'v_mov_b32_dpp v{PUB+1}, v{PUB} quad_perm:[2,2,2,2] row_mask:0xf bank_mask:0xf')

a.wait_vm(x_ops[-1])
matvec16(WQr, L_P0Q)
E('s_waitcnt lgkmcnt(0)')
E(f's_add_u32 s{sTAG}, s{sTAG}, 1')
E(f'v_mov_b32 v{PUB+2}, s{sTAG}'); E(f'v_mov_b32 v{PUB+3}, s{sTAG+1}')
E('s_barrier')
E(f's_cmp_lg_u32 s{sW}, 0'); E('s_cbranch_scc1 L_NOQPUB')
gather8(L_P0Q, vt[8])
pack_quad(vt[8])
E(f'v_lshrrev_b32 v{vt[0]}, 4, v{vLANE}'); E(f'v_lshlrev_b32 v{vt[0]}, 9, v{vt[0]}')
E(f'v_and_b32 v{vt[1]}, 12, v{vLANE}'); E(f'v_lshl_add_u32 v{vt[0]}, v{vt[1]}, 2, v{vt[0]}')
E(f's_lshl_b32 s{sT0}, s{sH}, 11'); E(f's_lshl_b32 s{sT1}, s{sBS}, 6'); E(f's_add_u32 s{sT0}, s{sT0}, s{sT1}'); E(f's_add_u32 s{sT0}, s{sT0}, {QBUF}')
E(f's_mov_b32 exec_lo, 0x11111111'); E(f's_mov_b32 exec_hi, 0x11111111')
a.vmem(f'buffer_store_dwordx4 v[{PUB}:{PUB+3}], v{vt[0]}, s[{D_WS}:{D_WS+3}], s{sT0} offen sc1', 'qpub', optional=True)
E('s_mov_b64 exec, -1')
a.label('L_NOQPUB')
stamp(1)
issue_chunk(1)
a.wait_vm(f_ops[-1])
matvec16(WFr, L_P0F)
E('s_waitcnt lgkmcnt(0)')
E('s_barrier')
E(f's_cmp_lg_u32 s{sW}, 1'); E('s_cbranch_scc1 L_NOHPUB')
E(f's_cmp_ge_u32 s{sR}, 27'); E('s_cbranch_scc1 L_NOHPUB')
gather8(L_P0F, vt[8])
bf16r(vt[8], vt[8], vt[9])
E(f'v_mul_f32 v{vt[10]}, 0xbfb8aa3b, v{vt[8]}')
E(f'v_exp_f32 v{vt[10]}, v{vt[10]}')
E(f'v_add_f32 v{vt[10]}, 1.0, v{vt[10]}')
E(f'v_rcp_f32 v{vt[10]}, v{vt[10]}')
E(f'v_mul_f32 v{vt[10]}, v{vt[8]}, v{vt[10]}')
bf16r(vt[10], vt[10], vt[9])
E(f'v_mov_b32_dpp v{vt[11]}, v{vt[8]} row_shl:8 row_mask:0xf bank_mask:0xf bound_ctrl:0')
E(f'v_mul_f32 v{vt[10]}, v{vt[10]}, v{vt[11]}')
pack_quad(vt[10])
E(f'v_lshrrev_b32 v{vt[0]}, 4, v{vLANE}'); E(f'v_mul_u32_u24 v{vt[0]}, 6912, v{vt[0]}')
E(f'v_and_b32 v{vt[1]}, 4, v{vLANE}'); E(f'v_lshl_add_u32 v{vt[0]}, v{vt[1]}, 2, v{vt[0]}')
E(f's_lshl_b32 s{sT0}, s{sSIG}, 5'); E(f's_add_u32 s{sT0}, s{sT0}, {HBUF}')
E(f's_mov_b32 exec_lo, 0x00110011'); E(f's_mov_b32 exec_hi, 0x00110011')
a.vmem(f'buffer_store_dwordx4 v[{PUB}:{PUB+3}], v{vt[0]}, s[{D_WS}:{D_WS+3}], s{sT0} offen sc1', 'hpub', optional=True)
E('s_mov_b64 exec, -1')
a.label('L_NOHPUB')
a.wait_vm(g_ops[-1])
stamp(2)
def q_loads(track=True):
    f = (lambda t: a.vmem(t, 'qpoll')) if track else E
    f(f'buffer_load_dwordx4 v[{G0}:{G0+3}], v{vQADDR}, s[{D_WS}:{D_WS+3}], 0 offen sc1')
    return f(f'buffer_load_dwordx4 v[{G1}:{G1+3}], v{vQADDR}, s[{D_WS}:{D_WS+3}], 0 offen offset:16 sc1')
qop = q_loads()
issue_chunk(2); issue_chunk(3)
gs = vt[8]
E(f'v_mov_b32 v{gs}, 0')
for k in range(5):
    xl, xh, wl, wh = vt[0], vt[1], vt[2], vt[3]
    E(f'v_lshlrev_b32 v{xl}, 16, v{XG+k}'); E(f'v_and_b32 v{xh}, s{sMASKHI}, v{XG+k}')
    E(f'v_lshlrev_b32 v{wl}, 16, v{GWr+k}'); E(f'v_and_b32 v{wh}, s{sMASKHI}, v{GWr+k}')
    E(f'v_mul_f32 v{xl}, v{xl}, v{wl}'); E(f'v_mul_f32 v{xh}, v{xh}, v{wh}')
    E(f'v_cvt_pk_bf16_f32 v{xl}, v{xl}, v{xh}')
    E(f'v_and_b32 v{xh}, s{sMASKHI}, v{xl}'); E(f'v_lshlrev_b32 v{xl}, 16, v{xl}')
    E(f'v_add_f32 v{gs}, v{gs}, v{xl}'); E(f'v_add_f32 v{gs}, v{gs}, v{xh}')
wave_reduce('v_add_f32', gs, vt[0])
bf16r(gs, gs, vt[0])
E(f'v_mul_f32 v{gs}, 0xbfb8aa3b, v{gs}'); E(f'v_exp_f32 v{gs}, v{gs}'); E(f'v_add_f32 v{gs}, 1.0, v{gs}'); E(f'v_rcp_f32 v{gs}, v{gs}')
bf16r(vG, gs, vt[0])
E(f'v_sub_f32 v{vOMG}, 1.0, v{vG}')
bf16r(vOMG, vOMG, vt[0])

a.wait_vm(qop)
poll_check('Q', [G0+2, G1+2], lambda: q_loads(False))
stamp(3)
Q = [G0, G0+1, G1, G1+1]
BETA = [0, 2, 1, 3]

wd_ops = []; hg_op = [None]
def h_loads(track=True):
    f = (lambda t: a.vmem(t, 'hg')) if track else E
    return f(f'buffer_load_dwordx4 v[{HG}:{HG+3}], v{vt[13]}, s[{D_WS}:{D_WS+3}], 0 offen sc1')
def ffn2_issue():
    E(f'v_and_b32 v{vt[13]}, 3, v{vLANE}'); E(f'v_lshlrev_b32 v{vt[13]}, 6, v{vt[13]}'); E(f'v_add_u32 v{vt[13]}, s{sJ}, v{vt[13]}')
    E(f'v_min_u32 v{vt[13]}, 215, v{vt[13]}')
    E(f's_mul_i32 s{sT0}, s{sB}, 216'); E(f'v_add_u32 v{vt[13]}, s{sT0}, v{vt[13]}'); E(f'v_lshlrev_b32 v{vt[13]}, 5, v{vt[13]}')
    E(f's_lshr_b32 s{sT0}, s{sW}, 2'); E(f's_lshl_b32 s{sT0}, s{sT0}, 4'); E(f's_add_u32 s{sT0}, s{sT0}, {HBUF}')
    E(f'v_add_u32 v{vt[13]}, s{sT0}, v{vt[13]}')
    hg_op[0] = h_loads()
    for k in range(4):
        E(f's_add_u32 s{sT0}, s{sJ}, {64*k}'); E(f's_lshl_b32 s{sT0}, s{sT0}, 3'); E(f's_add_u32 s{sT0}, s{sT0}, s{sW}')
        E(f's_mul_i32 s{sOFF}, s{sT0}, 1280')
        wd_ops.append(a.vmem(f'buffer_load_dwordx4 v[{A+4*k}:{A+4*k+3}], v{vL16}, s[{D_WD}:{D_WD+3}], s{sOFF} offen{pol(OPT["POL_WO"])}', 'wd'))
        wd_ops.append(a.vmem(f'buffer_load_dword v{A+16+k}, v{vL4}, s[{D_WD}:{D_WD+3}], s{sOFF} offen offset:1024{pol(OPT["POL_WO"])}', 'wd'))
def ffn2_compute():
    a.wait_vm(wd_ops[-1])
    poll_check('H', [HG+2], lambda: h_loads(False))
    for k in range(4):
        E(f'v_readlane_b32 s{sT0}, v{HG}, {k}'); E(f'v_readlane_b32 s{sT1}, v{HG+1}, {k}')
        E(f's_bitcmp1_b32 s{sW}, 1'); E(f's_cselect_b32 s{sT0}, s{sT1}, s{sT0}')
        E(f's_lshl_b32 s{sT1}, s{sT0}, 16'); E(f's_and_b32 s{sT0}, s{sT0}, s{sMASKHI}')
        E(f's_bitcmp1_b32 s{sW}, 0'); E(f's_cselect_b32 s{sO+k}, s{sT0}, s{sT1}')
    for k in range(4):
        regs = [A+4*k, A+4*k+1, A+4*k+2, A+4*k+3, A+16+k]
        for d, r in enumerate(regs):
            E(f'v_lshlrev_b32 v{vt[0]}, 16, v{r}'); E(f'v_and_b32 v{vt[1]}, s{sMASKHI}, v{r}')
            if k == 0:
                E(f'v_mul_f32 v{ACC+2*d}, s{sO+k}, v{vt[0]}'); E(f'v_mul_f32 v{ACC+2*d+1}, s{sO+k}, v{vt[1]}')
            else:
                E(f'v_fmac_f32 v{ACC+2*d}, s{sO+k}, v{vt[0]}'); E(f'v_fmac_f32 v{ACC+2*d+1}, s{sO+k}, v{vt[1]}')
    for i in range(10): E(f'v_mul_f32 v{ACC+i}, v{ACC+i}, v{vOMG}')
wo_ops = {}
def wo_issue(rows):
    for rr in rows:
        E(f's_add_u32 s{sOFF}, s{sWOB}, {rr*1280}')
        wo_ops[(rr, 0)] = a.vmem(f'buffer_load_dwordx4 v[{WOX+4*rr}:{WOX+4*rr+3}], v{vL16}, s[{D_WO}:{D_WO+3}], s{sOFF} offen{pol(OPT["POL_WO"])}', 'wo')
        wo_ops[(rr, 1)] = a.vmem(f'buffer_load_dword v{WOD+rr}, v{vL4}, s[{D_WO}:{D_WO+3}], s{sOFF} offen offset:1024{pol(OPT["POL_WO"])}', 'wo')
WP = {}
wo_free = [WOSP]
def wo_perm(k):
    a.wait_vm(wo_ops[(2*k+1, 1)])
    for d in range(5):
        ra = WOX+4*(2*k)+d if d < 4 else WOD+2*k
        rb = WOX+4*(2*k+1)+d if d < 4 else WOD+2*k+1
        dst = wo_free.pop()
        E(f'v_perm_b32 v{dst}, v{rb}, v{ra}, s{sSELLO}')
        E(f'v_perm_b32 v{rb}, v{rb}, v{ra}, s{sSELHI}')
        WP[(k, d, 0)] = dst; WP[(k, d, 1)] = rb
        wo_free.append(ra)

for c in range(16):
    u = c
    a.wait_vm(ring_ops[(u, 3)])
    base = RING + (u % 4)*16
    for j in range(4):
        for l in range(4):
            cs = '0' if j == 0 else f'v{T+l}'
            E(f'v_dot2_f32_bf16 v{T+l}, v{base+4*l+j}, v{Q[j]}, {cs}')
    issue_chunk(u + 4)
    E(f'v_add_f32_dpp v{U0}, v{T}, v{T} row_ror:8 row_mask:0xf bank_mask:0x3')
    E(f'v_add_f32_dpp v{U1}, v{T+2}, v{T+2} row_ror:8 row_mask:0xf bank_mask:0x3')
    E(f'v_add_f32_dpp v{U0}, v{T+1}, v{T+1} row_ror:8 row_mask:0xf bank_mask:0xc')
    E(f'v_add_f32_dpp v{U1}, v{T+3}, v{T+3} row_ror:8 row_mask:0xf bank_mask:0xc')
    E(f'v_add_f32_dpp v{WW}, v{U0}, v{U0} row_half_mirror row_mask:0xf bank_mask:0x5')
    E(f'v_add_f32_dpp v{WW}, v{U1}, v{U1} row_half_mirror row_mask:0xf bank_mask:0xa')
    E(f'v_add_f32_dpp v{WW}, v{WW}, v{WW} quad_perm:[1,0,3,2] row_mask:0xf bank_mask:0xf')
    E(f'v_add_f32_dpp v{WW}, v{WW}, v{WW} quad_perm:[2,3,0,1] row_mask:0xf bank_mask:0xf')
    it, cc = c // 4, c % 4
    if cc == 0: E(f'v_mov_b32 v{S+it}, v{WW}')
    else: E(f'v_cndmask_b32 v{S+it}, v{S+it}, v{WW}, s[{sQM[cc]}:{sQM[cc]+1}]')
    if c == 1: ffn2_issue()
    if c == 6: ffn2_compute()
    if 7 <= c <= 14: wo_issue([2*(c-7), 2*(c-7)+1])
stamp(4)
for i in range(0, 4, 2):
    E(f'v_cvt_pk_bf16_f32 v{vt[i]}, v{S+i}, v{S+i+1}')
for i in range(0, 4, 2):
    E(f'v_lshlrev_b32 v{S+i}, 16, v{vt[i]}'); E(f'v_and_b32 v{S+i+1}, s{sMASKHI}, v{vt[i]}')
for i in range(4): E(f'v_mul_f32 v{S+i}, 0x3db504f3, v{S+i}')
for i in range(0, 4, 2):
    E(f'v_cvt_pk_bf16_f32 v{vt[i]}, v{S+i}, v{S+i+1}')
for i in range(0, 4, 2):
    E(f'v_lshlrev_b32 v{S+i}, 16, v{vt[i]}'); E(f'v_and_b32 v{S+i+1}, s{sMASKHI}, v{vt[i]}')
E(f'v_max_f32 v{vM}, v{S}, v{S+1}'); E(f'v_max3_f32 v{vM}, v{vM}, v{S+2}, v{S+3}')
wave_reduce('v_max_f32', vM, vt[0])
E(f's_mov_b32 s{sT0}, {LOG2E:#x}')
for i in range(4): E(f'v_sub_f32 v{S+i}, v{S+i}, v{vM}')
for i in range(4): E(f'v_mul_f32 v{S+i}, s{sT0}, v{S+i}')
for i in range(4): E(f'v_exp_f32 v{S+i}, v{S+i}')
E(f'v_add_f32 v{vLS}, v{S}, v{S+1}'); E(f'v_add_f32 v{vt[1]}, v{S+2}, v{S+3}'); E(f'v_add_f32 v{vLS}, v{vLS}, v{vt[1]}')
wave_reduce('v_add_f32', vLS, vt[0])
E(f'v_mov_b32 v{PUB}, v{vM}'); E(f'v_mov_b32 v{PUB+1}, v{vLS}')
E(f's_lshl_b32 s{sT0}, s{sB}, 5'); E(f's_add_u32 s{sT0}, s{sT0}, s{sH}'); E(f's_lshl_b32 s{sT0}, s{sT0}, 4')
E(f's_lshl_b32 s{sT1}, s{sS}, 3'); E(f's_add_u32 s{sT0}, s{sT0}, s{sT1}'); E(f's_add_u32 s{sT0}, s{sT0}, s{sW}')
E(f's_lshl_b32 s{sT0}, s{sT0}, 4'); E(f's_add_u32 s{sT0}, s{sT0}, {MLBUF}')
E(f'v_mov_b32 v{vt[0]}, 0')
E('s_mov_b64 exec, 1')
a.vmem(f'buffer_store_dwordx4 v[{PUB}:{PUB+3}], v{vt[0]}, s[{D_WS}:{D_WS+3}], s{sT0} offen sc1', 'mlpub')
E('s_mov_b64 exec, -1')
for i in range(8): E(f'v_mov_b32 v{A+i}, 0')

ml_op = [None]
def ml_loads(track=True):
    f = (lambda t: a.vmem(t, 'ml')) if track else E
    return f(f'buffer_load_dwordx4 v[{ML}:{ML+3}], v{vMLADDR}, s[{D_WS}:{D_WS+3}], 0 offen sc1')
for c in range(16):
    u = 16 + c
    it, cc = c // 4, c % 4
    base = RING + (u % 4)*16
    for l in range(4):
        a.wait_vm(ring_ops[(u, l)]) if (l == 0 or c >= 12) else None
        if l == 0 and c < 12: a.wait_vm(ring_ops[(u, 3)])
        tb = TMP + (l % 2)*8
        for j in range(4):
            E(f'v_lshlrev_b32 v{tb+2*j}, 16, v{base+4*l+j}')
            E(f'v_and_b32 v{tb+2*j+1}, s{sMASKHI}, v{base+4*l+j}')
        n = 4*BETA[l] + cc
        for j in range(8):
            E(f'v_fmac_f32_dpp v{A+j}, v{S+it}, v{tb+j} row_newbcast:{n} row_mask:0xf bank_mask:0xf')
    if u + 4 < 32: issue_chunk(u + 4)
    if c < 8: wo_perm(c)
    if c == 9: ml_op[0] = ml_loads()
stamp(5)
a.wait_vm(ml_op[0])
poll_check('ML', [ML+2], lambda: ml_loads(False))
mM, mE = vt[0], vt[1]
E(f'v_mov_b32 v{mM}, v{ML}')
row_reduce('v_max_f32', mM)
E(f's_mov_b32 s{sT0}, {LOG2E:#x}')
E(f'v_sub_f32 v{mE}, v{ML}, v{mM}'); E(f'v_sub_f32 v{vt[2]}, v{vM}, v{mM}')
E(f'v_mul_f32 v{mE}, s{sT0}, v{mE}'); E(f'v_mul_f32 v{vt[2]}, s{sT0}, v{vt[2]}')
E(f'v_exp_f32 v{mE}, v{mE}'); E(f'v_exp_f32 v{vt[2]}, v{vt[2]}')
E(f'v_mul_f32 v{mE}, v{mE}, v{ML+1}')
row_reduce('v_add_f32', mE)
E(f'v_rcp_f32 v{mE}, v{mE}')
E(f'v_mul_f32 v{vt[2]}, v{vt[2]}, v{vG}')
E(f'v_mul_f32 v{vt[2]}, v{vt[2]}, v{mE}')
for i in range(8): E(f'v_mul_f32 v{A+i}, v{A+i}, v{vt[2]}')
for i in range(4): E(f'v_permlane32_swap_b32 v{A+i}, v{A+4+i}')
for i in range(4): E(f'v_add_f32 v{A+i}, v{A+i}, v{A+4+i}')
for i in range(2): E(f'v_permlane16_swap_b32 v{A+i}, v{A+2+i}')
for i in range(2): E(f'v_add_f32 v{A+i}, v{A+i}, v{A+2+i}')
E(f'v_and_b32 v{vt[0]}, 15, v{vLANE}'); E(f'v_lshrrev_b32 v{vt[1]}, 4, v{vLANE}'); E(f'v_lshl_add_u32 v{vt[0]}, v{vt[0]}, 2, v{vt[1]}')
E(f'v_lshlrev_b32 v{vt[0]}, 3, v{vt[0]}'); E(f's_mul_i32 s{sT0}, s{sW}, {OB_STRIDE}'); E(f'v_add_u32 v{vt[0]}, s{sT0}, v{vt[0]}')
E(f'ds_write_b64 v{vt[0]}, v[{A}:{A+1}] offset:{L_OB}')
E(f'v_lshrrev_b32 v{vt[1]}, 3, v{vLANE}'); E(f'v_mul_u32_u24 v{vt[1]}, {OB_STRIDE}, v{vt[1]}')
E(f'v_and_b32 v{vt[2]}, 7, v{vLANE}'); E(f'v_lshl_add_u32 v{vt[1]}, v{vt[2]}, 3, v{vt[1]}')
E(f's_lshl_b32 s{sT0}, s{sW}, 6'); E(f'v_add_u32 v{vt[1]}, s{sT0}, v{vt[1]}')
E('s_waitcnt lgkmcnt(0)')
E('s_barrier')
E(f'ds_read_b64 v[{vt[2]}:{vt[3]}], v{vt[1]} offset:{L_OB}')
E('s_waitcnt lgkmcnt(0)')
for r in (vt[2], vt[3]):
    E(f'v_add_f32_dpp v{r}, v{r}, v{r} row_ror:8 row_mask:0xf bank_mask:0xf')
for r in (vt[2], vt[3]):
    t = vt[4] if r == vt[2] else vt[5]
    E(f'v_mov_b32 v{t}, v{r}')
for r in (vt[2], vt[3]):
    t = vt[4] if r == vt[2] else vt[5]
    E(f'v_permlane16_swap_b32 v{t}, v{r}')
for r in (vt[2], vt[3]):
    t = vt[4] if r == vt[2] else vt[5]
    E(f'v_add_f32 v{r}, v{r}, v{t}'); E(f'v_mov_b32 v{t}, v{r}')
for r in (vt[2], vt[3]):
    t = vt[4] if r == vt[2] else vt[5]
    E(f'v_permlane32_swap_b32 v{t}, v{r}')
for r in (vt[2], vt[3]):
    t = vt[4] if r == vt[2] else vt[5]
    E(f'v_add_f32 v{r}, v{r}, v{t}')
E(f'v_cvt_pk_bf16_f32 v{vt[2]}, v{vt[2]}, v{vt[3]}')
for k in range(8): E(f'v_readlane_b32 s{sO+k}, v{vt[2]}, {k}')
for k in range(8):
    for d in range(5):
        for par in (0, 1):
            E(f'v_dot2c_f32_bf16 v{ACC+2*d+par}, s{sO+k}, v{WP[(k, d, par)]}')
E(f'v_mul_u32_u24 v{vt[0]}, 40, v{vLANE}'); E(f's_mul_i32 s{sT0}, s{sW}, {RB_STRIDE}'); E(f'v_add_u32 v{vt[0]}, s{sT0}, v{vt[0]}')
for d in range(5):
    E(f'ds_write_b64 v{vt[0]}, v[{ACC+2*d}:{ACC+2*d+1}] offset:{L_RB+8*d}')
E('s_waitcnt lgkmcnt(0)')
E('s_barrier')
E(f's_cmp_ge_u32 s{sW}, 5'); E('s_cbranch_scc1 L_END')
E(f'v_lshlrev_b32 v{vt[0]}, 3, v0')
RD = TMP
for w in range(8):
    E(f'ds_read_b64 v[{RD+2*w}:{RD+2*w+1}], v{vt[0]} offset:{L_RB + w*RB_STRIDE}')
E('s_waitcnt lgkmcnt(0)')
for st in (1, 2, 4):
    for w in range(0, 8, 2*st):
        for p in (0, 1):
            dst = PUB + p if (st == 4) else RD+2*w+p
            E(f'v_add_f32 v{dst}, v{RD+2*w+p}, v{RD+2*(w+st)+p}')
E(f's_lshl_b32 s{sT0}, s{sB}, 6'); E(f's_add_u32 s{sT0}, s{sT0}, s{sJ}'); E(f's_mul_i32 s{sT0}, s{sT0}, 5120'); E(f's_add_u32 s{sT0}, s{sT0}, {PBUF}')
E(f'v_lshlrev_b32 v{vt[0]}, 4, v0')
a.vmem(f'buffer_store_dwordx4 v[{PUB}:{PUB+3}], v{vt[0]}, s[{D_WS}:{D_WS+3}], s{sT0} offen sc1', 'ppub')
stamp(6)
E(f'v_mul_u32_u24 v{vt[13]}, 5120, v{vLANE}')
E(f's_mul_i32 s{sT0}, s{sB}, {64*5120}'); E(f's_mul_i32 s{sT1}, s{sJ}, 5'); E(f's_add_u32 s{sT1}, s{sT1}, s{sW}'); E(f's_lshl_b32 s{sT1}, s{sT1}, 4')
E(f's_add_u32 s{sT0}, s{sT0}, s{sT1}'); E(f's_add_u32 s{sT0}, s{sT0}, {PBUF}'); E(f'v_add_u32 v{vt[13]}, s{sT0}, v{vt[13]}')
def p_loads(track=True):
    f = (lambda t: a.vmem(t, 'pg')) if track else E
    return f(f'buffer_load_dwordx4 v[{ML}:{ML+3}], v{vt[13]}, s[{D_WS}:{D_WS+3}], 0 offen sc1')
pop = p_loads()
a.wait_vm(pop)
poll_check('P', [ML+2], lambda: p_loads(False))
for r in (8, 4, 2, 1):
    for p in (0, 1):
        E(f'v_add_f32_dpp v{ML+p}, v{ML+p}, v{ML+p} row_ror:{r} row_mask:0xf bank_mask:0xf')
for sw in ('v_permlane16_swap_b32', 'v_permlane32_swap_b32'):
    for p in (0, 1): E(f'v_mov_b32 v{vt[p]}, v{ML+p}')
    for p in (0, 1): E(f'{sw} v{vt[p]}, v{ML+p}')
    for p in (0, 1): E(f'v_add_f32 v{ML+p}, v{ML+p}, v{vt[p]}')
E(f'v_cvt_pk_bf16_f32 v{vt[2]}, v{ML}, v{ML+1}')
E(f's_lshl_b32 s{sT0}, s{sJ}, 4'); E(f's_lshl_b32 s{sT1}, s{sW}, 2'); E(f's_add_u32 s{sT0}, s{sT0}, s{sT1}')
E(f's_lshl_b32 s{sT1}, s{sJ}, 2'); E(f's_add_u32 s{sT1}, s{sT1}, 1024')
E(f's_cmp_eq_u32 s{sW}, 4'); E(f's_cselect_b32 s{sT0}, s{sT1}, s{sT0}')
E(f's_mul_i32 s{sT1}, s{sB}, 1280'); E(f's_add_u32 s{sT0}, s{sT0}, s{sT1}')
E(f'v_mov_b32 v{vt[0]}, 0')
E('s_mov_b64 exec, 1')
a.vmem(f'buffer_store_dword v{vt[2]}, v{vt[0]}, s[{D_OUT}:{D_OUT+3}], s{sT0} offen', 'out')
E(f's_or_b32 s{sT0}, s2, s{sW}'); E(f's_cmp_lg_u32 s{sT0}, 0'); E('s_cbranch_scc1 L_FIN')
a.vmem(f'buffer_store_dwordx2 v[{PUB+2}:{PUB+3}], v{vt[0]}, s[{D_WS}:{D_WS+3}], 0 offen sc1', 'epoch', optional=True)
a.label('L_FIN')
stamp(7)
E('s_waitcnt vmcnt(0)')
a.raw('L_END:')
E('s_endpgm')
for sp in slow_paths: sp()
a.raw('L_CODE_END:')
E('s_endpgm')
a.raw('.section .rodata,"a"'); a.raw('.p2align 6'); a.raw(f'.amdhsa_kernel {NAME}_kernel')
a.raw('  .amdhsa_next_free_vgpr 256'); a.raw('  .amdhsa_next_free_sgpr 102'); a.raw('  .amdhsa_accum_offset 256')
a.raw('  .amdhsa_group_segment_fixed_size 0'); a.raw('  .amdhsa_kernarg_size 104'); a.raw('  .amdhsa_user_sgpr_count 2')
a.raw('  .amdhsa_user_sgpr_kernarg_segment_ptr 1'); a.raw('  .amdhsa_system_sgpr_workgroup_id_x 1'); a.raw('.end_amdhsa_kernel')
out = sys.argv[1] if len(sys.argv) > 1 else 'cdna_kernels/' + NAME + '.s'
open(out, 'w').write(a.text())
print('wrote', out, 'lines', len(a.lines), 'auto nops', a.nops)
```

```python
import sys
from asmlib import Asm

NAME = 'gated_mix__mha_block_cached__swiglu_ffn__decode'
HEADER = open('cdna_kernels/' + NAME + '.s.ref').read().split('; Override launch')[0]

OPT = dict(POL_KV='nt', POL_WQ='', POL_W='', POL_WO='', PREFETCH_CODE=1, STAMPS=0, SPIN_LIMIT=1 << 17, D=2, PRIO=0, PRE=4, PFW=4, TAILPF=1)
for a_ in sys.argv[2:]:
    k, v = a_.split('=')
    OPT[k] = v if k.startswith('POL') else int(v)
def pol(p): return (' ' + p) if p else ''
D = OPT['D']; PRE = OPT['PRE']

QP = 0x1000; HBUF = 0x101000; MLBUF = 0x108000; PBUF = 0x110000; WS_SIZE = 0x250000
STAMPBUF = 0x300000
L_P0F = 0; L_CNT = 2048; L_XL = 2304; L_QS = 3072; L_QB = 7168; L_OB = 9216; OB_STRIDE = 576
L_RB = 13824; RB_STRIDE = 2560; L_WQ = 34304
LDS_BYTES = 83968

S_X, S_K, S_V, S_WQ, S_WO, S_WG, S_WU, S_WD, S_GW, S_OUT, S_DBG, S_WS = 4, 6, 8, 10, 12, 16, 18, 20, 22, 24, 26, 28
D_K, D_V, D_WQ, D_X, D_WO, D_WD, D_GW, D_WS, D_OUT = 32, 36, 40, 44, 48, 52, 56, 60, 64
sW, sH, sB, sBS, sS, sJ, sSIG, sOFF = 68, 69, 70, 71, 72, 73, 74, 75
sTAG = 76
sMASKHI, sSELLO, sSELHI = 78, 79, 80
sR = 81
sQM = [None, 82, 84, 86]
sO = 88
D_G, D_U = 88, 92
sT0, sT1, sT2, sT3 = 96, 97, 98, 99
sSPIN = 100
sWOB = 30
sKA = 31
sPC = 0
vTID, vLANE, vKOFF, vL16, vL4, vDUM = 0, 1, 2, 3, 4, 5
RING = 16
WOX = 80; WOD = 144; WOSP = 160
ACC = 164; A = 174; TMP = 182
G0 = 198; G1 = 202
S = 206; T = 210; U0, U1, WW = 214, 215, 216
ML = 218; HG = 222; PUB = 226
vG, vOMG, vM, vLS = 230, 231, 232, 233
vt = [234 + i for i in range(14)]
WFr = 90; XB = [100, 106, 112, 118]; P0A = 124; XG = 140; GWr = 146
vXOFF, vFOFF, vGOFF, vP0W = 6, 8, 9, 10
vQADDR, vMLADDR = 11, 12
vDMA = 7

a = Asm()
E = a.emit
LOG2E = 0x3fb8aa3b

def srd(d, lo, hi, size, add=None):
    if add is None:
        E(f's_mov_b32 s{d}, s{lo}'); E(f's_and_b32 s{d+1}, s{hi}, 0xffff')
    else:
        E(f's_add_u32 s{d}, s{lo}, s{add}'); E(f's_addc_u32 s{d+1}, s{hi}, 0'); E(f's_and_b32 s{d+1}, s{d+1}, 0xffff')
    if isinstance(size, int): E(f's_mov_b32 s{d+2}, {size}')
    else: E(size)
    E(f's_mov_b32 s{d+3}, 0x20000')

def bf16r(dst, src, tmp):
    E(f'v_cvt_pk_bf16_f32 v{tmp}, v{src}, v{src}')
    E(f'v_lshlrev_b32 v{dst}, 16, v{tmp}')

def row_reduce(op, v):
    for r in (8, 4, 2, 1):
        E(f'{op}_dpp v{v}, v{v}, v{v} row_ror:{r} row_mask:0xf bank_mask:0xf')

def wave_reduce(op, v, t):
    row_reduce(op, v)
    E(f'v_mov_b32 v{t}, v{v}'); E(f'v_permlane16_swap_b32 v{t}, v{v}'); E(f'{op} v{v}, v{v}, v{t}')
    E(f'v_mov_b32 v{t}, v{v}'); E(f'v_permlane32_swap_b32 v{t}, v{v}'); E(f'{op} v{v}, v{v}, v{t}')

slow_paths = []
def tagcmp(tagregs):
    E(f'v_cmp_eq_u64 vcc, s[{sTAG}:{sTAG+1}], v[{tagregs[0]}:{tagregs[0]+1}]')
    for t in tagregs[1:]:
        E(f'v_cmp_eq_u64 s[{sT0}:{sT0+1}], s[{sTAG}:{sTAG+1}], v[{t}:{t+1}]')
        E(f's_and_b64 vcc, vcc, s[{sT0}:{sT0+1}]')
    E('s_cmp_eq_u64 vcc, -1')
def add_slow(name, tagregs, reissue):
    def slow():
        a.raw(f'L_SLOW_{name}:'); a.barrier_hist()
        E(f's_mov_b32 s{sSPIN}, 0')
        a.raw(f'L_SLOWLOOP_{name}:'); a.barrier_hist()
        E(f's_add_u32 s{sSPIN}, s{sSPIN}, 1')
        E(f's_cmp_gt_u32 s{sSPIN}, {OPT["SPIN_LIMIT"]}')
        E(f's_cbranch_scc1 L_GIVEUP_{name}')
        E('s_sleep 1')
        reissue()
        E('s_waitcnt vmcnt(0)')
        tagcmp(tagregs)
        E(f's_cbranch_scc0 L_SLOWLOOP_{name}')
        a.raw(f'L_GIVEUP_{name}:'); a.barrier_hist()
        E('s_nop 4')
        E(f's_branch L_OK_{name}')
    slow_paths.append(slow)
def poll_check(name, tagregs, reissue):
    tagcmp(tagregs)
    E(f's_cbranch_scc0 L_SLOW_{name}')
    a.label(f'L_OK_{name}')
    add_slow(name, tagregs, reissue)

vSTAMP = 248
PROFILES = {1: ['entry','kernarg','issued','dmawait','barA','qpub','c0land','q1ret','qready','Kend','Vend','ppub','end'],
            2: ['entry','qready','Kend','Vend','MLok','preT1','postT1','afterdot','postT2','ppub','poll1','pollok','end']}
def stamp(nm):
    if not OPT['STAMPS']: return
    if nm not in PROFILES[OPT['STAMPS']]: return
    i = PROFILES[OPT['STAMPS']].index(nm)
    E(f's_memrealtime s[{sT2}:{sT3}]'); E('s_waitcnt lgkmcnt(0)')
    E(f'v_writelane_b32 v{vSTAMP}, s{sT2}, {i}')
def stamp_flush():
    if not OPT['STAMPS']: return
    E(f's_lshl_b32 s{sT2}, s2, 3'); E(f's_add_u32 s{sT2}, s{sT2}, s{sW}'); E(f's_lshl_b32 s{sT2}, s{sT2}, 6')
    E(f's_add_u32 s{sT2}, s{sT2}, {STAMPBUF}')
    E('s_mov_b64 exec, 0xffff')
    E(f'v_mbcnt_lo_u32_b32 v{vSTAMP+1}, -1, 0'); E(f'v_lshlrev_b32 v{vSTAMP+1}, 2, v{vSTAMP+1}'); E(f'v_add_u32 v{vSTAMP+1}, s{sT2}, v{vSTAMP+1}')
    E(f'global_store_dword v{vSTAMP+1}, v{vSTAMP}, s[{S_WS}:{S_WS+1}]')

a.raw(HEADER.rstrip())
a.raw('; Override launch geometry by editing the next line.')
a.raw(f'; @launch grid=(256,1,1) block=(512,1,1) lds={LDS_BYTES}')
a.raw('.amdgcn_target "amdgcn-amd-amdhsa--gfx950"')
a.raw('.text'); a.raw(f'.globl {NAME}_kernel'); a.raw('.p2align 8'); a.raw(f'.type {NAME}_kernel,@function')
a.raw(f'{NAME}_kernel:')
E('s_cmp_ge_u32 s2, 256')
E('s_cbranch_scc1 L_END')
stamp('entry')
E('s_load_dwordx16 s[4:19], s[0:1], 0')
E('s_load_dwordx8 s[20:27], s[0:1], 64')
E('s_load_dwordx2 s[28:29], s[0:1], 96')
E(f'v_and_b32 v{vLANE}, 63, v0')
E(f'v_lshrrev_b32 v{vt[0]}, 6, v0')
if OPT['PREFETCH_CODE']:
    E(f's_getpc_b64 s[{sPC}:{sPC+1}]')
    a.raw('L_PCREF:')
    E(f'v_lshrrev_b32 v{vt[1]}, 6, v0'); E(f'v_cmp_eq_u32 vcc, {OPT["PFW"]}, v{vt[1]}')
    E('s_and_saveexec_b64 s[30:31], vcc')
    E('s_cbranch_execz L_NOPF')
    E(f'v_lshlrev_b32 v{vt[1]}, 7, v{vLANE}')
    a.vmem(f'global_load_dword v{vDUM}, v{vt[1]}, s[{sPC}:{sPC+1}]', 'codepf', optional=True)
    a.label('L_NOPF')
    E('s_mov_b64 exec, -1')
def code_prefetch(base):
    if not OPT['PREFETCH_CODE']: return
    E(f's_lshl_b32 s{sT0}, s{sW}, 13'); E(f's_add_u32 s{sT0}, s{sT0}, {base}')
    E(f'v_lshlrev_b32 v{vt[0]}, 7, v{vLANE}'); E(f'v_add_u32 v{vt[0]}, s{sT0}, v{vt[0]}')
    E(f'v_min_u32 v{vt[0]}, L_CODE_END-L_PCREF-4, v{vt[0]}')
    a.vmem(f'global_load_dword v{vDUM}, v{vt[0]}, s[{sPC}:{sPC+1}]', 'codepf')
E(f'v_readfirstlane_b32 s{sW}, v{vt[0]}')
E(f's_and_b32 s{sT0}, s2, 7')
E(f's_lshr_b32 s{sR}, s2, 3')
E(f's_and_b32 s{sT1}, s{sR}, 3')
E(f's_lshl_b32 s{sH}, s{sT0}, 2'); E(f's_add_u32 s{sH}, s{sH}, s{sT1}')
E(f's_lshr_b32 s{sBS}, s{sR}, 2'); E(f's_lshr_b32 s{sB}, s{sBS}, 1'); E(f's_and_b32 s{sS}, s{sBS}, 1')
E(f's_lshl_b32 s{sJ}, s{sH}, 1'); E(f's_add_u32 s{sJ}, s{sJ}, s{sS}')
E(f's_mul_i32 s{sSIG}, s{sT0}, 27'); E(f's_add_u32 s{sSIG}, s{sSIG}, s{sR}'); E(f's_min_u32 s{sSIG}, s{sSIG}, 215')
E(f'v_lshrrev_b32 v{vt[1]}, 4, v{vLANE}'); E(f'v_lshlrev_b32 v{vt[1]}, 13, v{vt[1]}')
E(f'v_and_b32 v{vt[2]}, 15, v{vLANE}'); E(f'v_lshl_add_u32 v{vDMA}, v{vt[2]}, 4, v{vt[1]}')
E(f'v_lshlrev_b32 v{vL16}, 4, v{vLANE}'); E(f'v_lshlrev_b32 v{vL4}, 2, v{vLANE}')
E(f's_lshl_b32 s{sT1}, s{sW}, 12'); E(f'v_add_u32 v{vKOFF}, s{sT1}, v{vL16}')
E(f'v_mul_u32_u24 v{vt[3]}, 205, v{vLANE}'); E(f'v_lshrrev_b32 v{vt[3]}, 11, v{vt[3]}')
E(f'v_mul_u32_u24 v{vt[4]}, 10, v{vt[3]}'); E(f'v_sub_u32 v{vt[4]}, v{vLANE}, v{vt[4]}')
E(f'v_mul_u32_u24 v{vt[3]}, 1280, v{vt[3]}'); E(f'v_lshl_add_u32 v{vt[3]}, v{vt[4]}, 4, v{vt[3]}')
E(f's_mul_i32 s{sT1}, s{sBS}, 160'); E(f'v_add_u32 v{vt[3]}, s{sT1}, v{vt[3]}')
E(f's_lshl_b32 s{sT0}, s{sH}, 8')
E(f's_lshl_b32 s{sT1}, s{sB}, 5'); E(f's_add_u32 s{sT1}, s{sT1}, s{sH}'); E(f's_lshl_b32 s{sT1}, s{sT1}, 20')
E(f's_lshl_b32 s{sOFF}, s{sS}, 19'); E(f's_add_u32 s{sT1}, s{sT1}, s{sOFF}')
sROW = sSPIN
E(f's_mul_i32 s{sROW}, s{sBS}, 80'); E(f's_mul_i32 s{sOFF}, s{sW}, 20')
E(f's_add_u32 s{sROW}, s{sROW}, s{sOFF}'); E(f's_lshl_b32 s{sROW}, s{sROW}, 13')
E('s_waitcnt lgkmcnt(0)')
stamp('kernarg')
srd(D_WQ, S_WQ, S_WQ+1, f's_sub_u32 s{D_WQ+2}, 5242880, s{sT0}', add=sT0)
srd(D_X, S_X, S_X+1, 5120)
E(f's_cmp_ge_u32 s{sW}, 4'); E('s_cbranch_scc1 L_NOWQ')
E(f's_mul_i32 s{sT0}, s{sW}, {20*256}'); E(f's_add_u32 s{sT0}, s{sT0}, {L_WQ}')
dma_ops = []
for i in range(5):
    E(f's_add_u32 m0, s{sT0}, {i*1024}')
    E(f's_add_u32 s{sOFF}, s{sROW}, {i*4*8192}')
    dma_ops.append(a.vmem(f'buffer_load_dwordx4 v{vDMA}, s[{D_WQ}:{D_WQ+3}], s{sOFF} offen{pol(OPT["POL_WQ"])} lds', 'wqdma', optional=True))
E(f's_cmp_lg_u32 s{sW}, 0'); E('s_cbranch_scc1 L_NOWQ')
E(f's_mov_b32 m0, {L_XL}')
E('s_mov_b32 exec_lo, -1'); E('s_mov_b32 exec_hi, 0xff')
dma_ops.append(a.vmem(f'buffer_load_dwordx4 v{vt[3]}, s[{D_X}:{D_X+3}], 0 offen lds', 'xdma', optional=True))
E('s_mov_b64 exec, -1')
a.label('L_NOWQ')
srd(D_K, S_K, S_K+1, 524288, add=sT1)
srd(D_V, S_V, S_V+1, 524288, add=sT1)

ring_ops = {}
issued = set()
def issue_chunk(u, track=True):
    d = D_K if u < 16 else D_V
    c = u % 16
    if c == 0: so = '0'
    else: E(f's_mov_b32 s{sOFF}, {c*32768}'); so = f's{sOFF}'
    for l in range(4):
        r = RING + (u % 4)*16 + l*4
        off = f' offset:{l*1024}' if l else ''
        t = f'buffer_load_dwordx4 v[{r}:{r+3}], v{vKOFF}, s[{d}:{d+3}], {so} offen{off}{pol(OPT["POL_KV"])}'
        if track: ring_ops[(u, l)] = a.vmem(t, f'ring{u}')
        else: E(t)
    if track: issued.add(u)
E(f's_cmp_lt_u32 s{sW}, 4'); E('s_cbranch_scc1 L_NOC0')
issue_chunk(0, track=False)
a.label('L_NOC0')
stamp('issued')
E(f's_load_dwordx2 s[{sTAG}:{sTAG+1}], s[{S_WS}:{S_WS+1}], 0')
E(f's_mov_b32 s{sMASKHI}, 0xffff0000'); E(f's_mov_b32 s{sSELLO}, 0x05040100'); E(f's_mov_b32 s{sSELHI}, 0x07060302')
srd(D_WS, S_WS, S_WS+1, WS_SIZE)
E(f's_cmp_lg_u32 s{sW}, 5'); E('s_cbranch_scc1 L_NOZ')
E(f'v_mov_b32 v{vt[0]}, 0'); E(f'v_mov_b32 v{vt[1]}, {L_CNT}'); E(f'ds_write_b32 v{vt[1]}, v{vt[0]}')
a.label('L_NOZ')
vBA, vAA = vt[5], vt[6]
E(f'v_lshrrev_b32 v{vBA}, 2, v{vLANE}'); E(f'v_lshlrev_b32 v{vBA}, 8, v{vBA}')
E(f'v_and_b32 v{vt[0]}, 3, v{vLANE}'); E(f'v_lshl_add_u32 v{vBA}, v{vt[0]}, 3, v{vBA}')
E(f's_lshl_b32 s{sT0}, s{sW}, 5'); E(f'v_add_u32 v{vBA}, s{sT0}, v{vBA}')
E(f'v_mul_u32_u24 v{vAA}, 160, v{vt[0]}'); E(f'v_lshrrev_b32 v{vt[1]}, 4, v{vLANE}'); E(f'v_lshl_add_u32 v{vAA}, v{vt[1]}, 3, v{vAA}')
vQP = vt[7]
E(f'v_lshlrev_b32 v{vQP}, 13, v{vt[1]}'); E(f'v_and_b32 v{vt[2]}, 14, v{vLANE}'); E(f'v_lshl_add_u32 v{vQP}, v{vt[2]}, 3, v{vQP}')
E(f's_lshl_b32 s{sT0}, s{sH}, 15'); E(f's_lshl_b32 s{sT1}, s{sBS}, 10'); E(f's_add_u32 s{sT0}, s{sT0}, s{sT1}')
E(f's_lshl_b32 s{sT1}, s{sW}, 7'); E(f's_add_u32 s{sT0}, s{sT0}, s{sT1}'); E(f's_add_u32 s{sT0}, s{sT0}, {QP}')
E(f'v_add_u32 v{vQP}, s{sT0}, v{vQP}')
E(f's_lshl_b32 s{sT0}, s{sH}, 15'); E(f's_lshl_b32 s{sT1}, s{sB}, 13'); E(f's_add_u32 s{sT0}, s{sT0}, s{sT1}')
E(f's_lshl_b32 s{sT1}, s{sW}, 11'); E(f's_add_u32 s{sT0}, s{sT0}, s{sT1}'); E(f's_add_u32 s{sT0}, s{sT0}, {QP}')
E(f'v_add_u32 v{vQADDR}, s{sT0}, v{vL16}')
E(f's_mov_b32 s{sQM[1]}, 0xffff0000'); E(f's_mov_b32 s{sQM[1]+1}, 0')
E(f's_mov_b32 s{sQM[2]}, 0'); E(f's_mov_b32 s{sQM[2]+1}, 0x0000ffff')
E(f's_mov_b32 s{sQM[3]}, 0'); E(f's_mov_b32 s{sQM[3]+1}, 0xffff0000')
DM = ACC
for i in range(4): E(f'v_mov_b32 v{DM+i}, 0')
E(f's_cmp_ge_u32 s{sW}, 4'); E('s_cbranch_scc1 L_NODW')
E('s_waitcnt vmcnt(0)')
a.label('L_NODW')
stamp('dmawait')
E('s_waitcnt lgkmcnt(0)')
E(f's_add_u32 s{sTAG}, s{sTAG}, 1')
E(f'v_mov_b32 v{PUB+2}, s{sTAG}'); E(f'v_mov_b32 v{PUB+3}, s{sTAG+1}')
E('s_barrier')
stamp('barA')
FA, FB = TMP, TMP + 10
FA = A; FB = A + 10
for s_ in range(5):
    E(f'ds_read_b64 v[{FA+2*s_}:{FA+2*s_+1}], v{vAA} offset:{L_XL + 32*s_}')
    E(f'ds_read_b64_tr_b16 v[{FB+2*s_}:{FB+2*s_+1}], v{vBA} offset:{L_WQ + s_*16*256}')
for s_ in range(5):
    E(f's_waitcnt lgkmcnt({2*(4-s_)})')
    E(f'v_mfma_f32_16x16x16_bf16 v[{DM}:{DM+3}], v[{FA+2*s_}:{FA+2*s_+1}], v[{FB+2*s_}:{FB+2*s_+1}], v[{DM}:{DM+3}]')
E('s_nop 7'); E('s_nop 1')
E(f'v_mov_b32 v{PUB}, v{DM}')
for g in (1, 2, 3):
    E(f'v_cndmask_b32 v{PUB}, v{PUB}, v{DM+g}, s[{sQM[g]}:{sQM[g]+1}]')
E(f'v_mov_b32_dpp v{PUB+1}, v{PUB} quad_perm:[1,0,3,2] row_mask:0xf bank_mask:0xf')
E('s_mov_b32 exec_lo, 0x55555555'); E('s_mov_b32 exec_hi, 0x55555555')
a.vmem(f'buffer_store_dwordx4 v[{PUB}:{PUB+3}], v{vQP}, s[{D_WS}:{D_WS+3}], 0 offen sc1', 'qpub')
E('s_mov_b64 exec, -1')
stamp('qpub')
E(f's_cmp_ge_u32 s{sW}, 4'); E('s_cbranch_scc1 L_HASC0')
issue_chunk(0, track=False)
E('s_branch L_C1J')
a.label('L_HASC0')
issue_chunk(1, track=False)
a.label('L_C1J')
g_, cp_, r0_ = vt[1], vt[2], vt[3]
E(f'v_lshrrev_b32 v{g_}, 3, v{vLANE}'); E(f'v_and_b32 v{cp_}, 7, v{vLANE}')
E(f'v_mul_u32_u24 v{r0_}, 10, v{g_}'); E(f's_mul_i32 s{sT1}, s{sW}, 80'); E(f'v_add_u32 v{r0_}, s{sT1}, v{r0_}')
E(f'v_lshlrev_b32 v{vXOFF}, 1, v{r0_}')
E(f'v_mul_u32_u24 v{vFOFF}, 3456, v{r0_}'); E(f'v_and_b32 v{vt[4]}, 3, v{cp_}'); E(f'v_lshl_add_u32 v{vFOFF}, v{vt[4]}, 2, v{vFOFF}')
E(f'v_mul_u32_u24 v{vGOFF}, 20, v{vLANE}')
E(f's_lshl_b32 s{sT0}, s{sSIG}, 4')
srd(D_G, S_WG, S_WG+1, f's_sub_u32 s{D_G+2}, 2211840, s{sT0}', add=sT0)
srd(D_U, S_WU, S_WU+1, f's_sub_u32 s{D_U+2}, 2211840, s{sT0}', add=sT0)
srd(D_GW, S_GW, S_GW+1, 1280)
srd(D_OUT, S_OUT, S_OUT+1, 5120)
srd(D_WD, S_WD, S_WD+1, 2211840)
E(f's_mul_i32 s{sT0}, s{sH}, {128*1280}')
srd(D_WO, S_WO, S_WO+1, 163840, add=sT0)
E(f's_mul_i32 s{sWOB}, s{sW}, {16*1280}')
for cc in (1, 2, 3):
    m = (0x11111111 << cc) & 0xffffffff
    E(f's_mov_b32 s{sQM[cc]}, {m:#x}'); E(f's_mov_b32 s{sQM[cc]+1}, {m:#x}')
E(f'v_and_b32 v{vt[0]}, 0x30, v{vLANE}'); E(f'v_and_b32 v{vt[1]}, 7, v{vLANE}'); E(f'v_lshl_add_u32 v{vt[0]}, v{vt[1]}, 1, v{vt[0]}')
E(f'v_bfe_u32 v{vt[1]}, v{vLANE}, 3, 1'); E(f'v_add_u32 v{vt[0]}, v{vt[0]}, v{vt[1]}'); E(f'v_lshlrev_b32 v{vt[0]}, 2, v{vt[0]}')
E(f's_lshl_b32 s{sT0}, s{sW}, 8'); E(f'v_add_u32 v{vP0W}, s{sT0}, v{vt[0]}')
E(f'v_and_b32 v{vt[0]}, 15, v{vLANE}'); E(f'v_lshlrev_b32 v{vt[0]}, 4, v{vt[0]}')
E(f's_lshl_b32 s{sT0}, s{sB}, 5'); E(f's_add_u32 s{sT0}, s{sT0}, s{sH}'); E(f's_lshl_b32 s{sT0}, s{sT0}, 8'); E(f's_add_u32 s{sT0}, s{sT0}, {MLBUF}')
E(f'v_add_u32 v{vMLADDR}, s{sT0}, v{vt[0]}')

GQ0, GQ1 = G0, G1
def q_load():
    E(f'buffer_load_dwordx4 v[{GQ0}:{GQ0+3}], v{vQADDR}, s[{D_WS}:{D_WS+3}], 0 offen sc1')
    E(f'buffer_load_dwordx4 v[{GQ1}:{GQ1+3}], v{vQADDR}, s[{D_WS}:{D_WS+3}], 0 offen offset:1024 sc1')
E('s_waitcnt vmcnt(0)')
stamp('c0land')
E(f's_cmp_ge_u32 s{sW}, 4'); E('s_cbranch_scc1 L_Q_NOG')
q_load()
issue_chunk(1, track=False)
issue_chunk(2, track=False)
E('s_waitcnt vmcnt(8)')
stamp('q1ret')
tagcmp([GQ0+2, GQ1+2])
E('s_cbranch_scc0 L_SLOW_Q')
a.label('L_OK_Q')
add_slow('Q', [GQ0+2, GQ1+2], q_load)
E(f'v_lshlrev_b32 v{vt[0]}, 3, v{vLANE}'); E(f's_lshl_b32 s{sT0}, s{sW}, 10'); E(f'v_add_u32 v{vt[1]}, s{sT0}, v{vt[0]}')
E(f'ds_write_b64 v{vt[1]}, v[{GQ0}:{GQ0+1}] offset:{L_QS}')
E(f'ds_write_b64 v{vt[1]}, v[{GQ1}:{GQ1+1}] offset:{L_QS+512}')
E('s_branch L_Q_JOIN')
a.label('L_Q_NOG')
issue_chunk(2, track=False)
a.label('L_Q_JOIN')
for u_ in range(3):
    for l in range(4):
        ring_ops[(u_, l)] = len(a.vm); a.vm.append((f'ring{u_}', False))
    issued.add(u_)
E(f'v_lshlrev_b32 v{vt[0]}, 3, v{vLANE}')
E('s_waitcnt lgkmcnt(0)')
E('s_barrier')
RDQ = A
for w in range(8):
    E(f'ds_read_b64 v[{RDQ+2*w}:{RDQ+2*w+1}], v{vt[0]} offset:{L_QS + w*512}')
E(f's_lshl_b32 s{sT0}, s{sW}, 8'); E(f'v_add_u32 v{vt[2]}, s{sT0}, v{vL4}')
E(f'v_and_b32 v{vt[3]}, 15, v{vLANE}'); E(f'v_lshlrev_b32 v{vt[3]}, 4, v{vt[3]}'); E(f'v_add_u32 v{vt[3]}, s{sT0}, v{vt[3]}')
E('s_waitcnt lgkmcnt(0)')
for st in (1, 2, 4):
    for w in range(0, 8, 2*st):
        for p in (0, 1):
            E(f'v_add_f32 v{RDQ+2*w+p}, v{RDQ+2*w+p}, v{RDQ+2*(w+st)+p}')
E(f'v_cvt_pk_bf16_f32 v{vt[4]}, v{RDQ}, v{RDQ+1}')
E(f'ds_write_b32 v{vt[2]}, v{vt[4]} offset:{L_QB}')
E('s_waitcnt lgkmcnt(0)')
E(f'ds_read_b128 v[{G0}:{G0+3}], v{vt[3]} offset:{L_QB}')
E('s_waitcnt lgkmcnt(0)')
stamp('qready')
Q = [G0, G0+1, G0+2, G0+3]
BETA = [0, 2, 1, 3]

def matvec16(Wr, ldsbase):
    for k in range(5):
        l, h = (vt[0], vt[1]) if k % 2 == 0 else (vt[2], vt[3])
        E(f'v_perm_b32 v{l}, v{Wr+2*k+1}, v{Wr+2*k}, s{sSELLO}')
        E(f'v_perm_b32 v{h}, v{Wr+2*k+1}, v{Wr+2*k}, s{sSELHI}')
        for b in range(4):
            for par, src in ((0, l), (1, h)):
                acc = P0A + 2*b + par
                c = '0' if k == 0 else f'v{acc}'
                E(f'v_dot2_f32_bf16 v{acc}, v{src}, v{XB[b]+k}, {c}')
    for par in (0, 1):
        for b in (0, 1):
            E(f'v_permlane32_swap_b32 v{P0A+2*b+par}, v{P0A+2*(b+2)+par}')
    for par in (0, 1):
        for b in (0, 1):
            E(f'v_add_f32 v{P0A+2*b+par}, v{P0A+2*b+par}, v{P0A+2*(b+2)+par}')
    for par in (0, 1):
        E(f'v_permlane16_swap_b32 v{P0A+par}, v{P0A+2+par}')
    for par in (0, 1):
        E(f'v_add_f32 v{P0A+par}, v{P0A+par}, v{P0A+2+par}')
    E(f'v_add_f32_dpp v{vt[4]}, v{P0A}, v{P0A} row_ror:8 row_mask:0xf bank_mask:0x3')
    E(f'v_add_f32_dpp v{vt[4]}, v{P0A+1}, v{P0A+1} row_ror:8 row_mask:0xf bank_mask:0xc')
    E(f'ds_write_b32 v{vP0W}, v{vt[4]} offset:{ldsbase}')
def gather8(ldsbase, dst):
    t = [vt[0], vt[2], vt[4], vt[6]]
    for i in range(4):
        E(f'ds_read2st64_b32 v[{t[i]}:{t[i]+1}], v{vL4} offset0:{ldsbase//256 + 2*i} offset1:{ldsbase//256 + 2*i + 1}')
    E('s_waitcnt lgkmcnt(0)')
    for i in range(4): E(f'v_add_f32 v{t[i]}, v{t[i]}, v{t[i]+1}')
    E(f'v_add_f32 v{t[0]}, v{t[0]}, v{t[1]}'); E(f'v_add_f32 v{t[2]}, v{t[2]}, v{t[3]}')
    E(f'v_add_f32 v{dst}, v{t[0]}, v{t[2]}')
def pack_quad(src):
    E(f'v_mov_b32_dpp v{vt[9]}, v{src} quad_perm:[1,1,3,3] row_mask:0xf bank_mask:0xf')
    E(f'v_cvt_pk_bf16_f32 v{PUB}, v{src}, v{vt[9]}')
    E(f'v_mov_b32_dpp v{PUB+1}, v{PUB} quad_perm:[2,2,2,2] row_mask:0xf bank_mask:0xf')

x_ops = []; f_ops = []; g_ops = []
def ffn1_x():
    for b in range(4):
        x_ops.append(a.vmem(f'buffer_load_dwordx4 v[{XB[b]}:{XB[b]+3}], v{vXOFF}, s[{D_X}:{D_X+3}], 0 offen offset:{b*1280}', 'x'))
        x_ops.append(a.vmem(f'buffer_load_dword v{XB[b]+4}, v{vXOFF}, s[{D_X}:{D_X+3}], 0 offen offset:{b*1280+16}', 'x'))
def ffn1_w(which, lo, hi):
    d, mask = ((D_G, 0x0f0f0f0f), (D_U, 0xf0f0f0f0))[which]
    E(f's_mov_b32 exec_lo, {mask:#x}'); E(f's_mov_b32 exec_hi, {mask:#x}')
    for i in range(lo, hi):
        if i == 0: so = '0'; off = ''
        elif i == 1: so = '0'; off = ' offset:3456'
        else: E(f's_mov_b32 s{sOFF}, {i*3456}'); so = f's{sOFF}'; off = ''
        f_ops.append(a.vmem(f'buffer_load_dword v{WFr+i}, v{vFOFF}, s[{d}:{d+3}], {so} offen{off}{pol(OPT["POL_W"])}', 'ffn'))
    E('s_mov_b64 exec, -1')
def ffn1_compute():
    a.wait_vm(max(f_ops[-1], x_ops[-1]))
    matvec16(WFr, L_P0F)
    E('s_waitcnt lgkmcnt(0)')
    E(f'v_mov_b32 v{vt[0]}, {L_CNT}'); E(f'v_mov_b32 v{vt[1]}, 1')
    E('s_mov_b64 exec, 1')
    E(f'ds_add_rtn_u32 v{vt[2]}, v{vt[0]}, v{vt[1]}')
    E('s_waitcnt lgkmcnt(0)')
    E('s_mov_b64 exec, -1')
    E(f'v_readfirstlane_b32 s{sT0}, v{vt[2]}')
    E(f's_cmp_lg_u32 s{sT0}, 7'); E('s_cbranch_scc1 L_NOHPUB')
    E(f's_cmp_ge_u32 s{sR}, 27'); E('s_cbranch_scc1 L_NOHPUB')
    gather8(L_P0F, vt[8])
    bf16r(vt[8], vt[8], vt[9])
    E(f'v_mul_f32 v{vt[10]}, 0xbfb8aa3b, v{vt[8]}')
    E(f'v_exp_f32 v{vt[10]}, v{vt[10]}')
    E(f'v_add_f32 v{vt[10]}, 1.0, v{vt[10]}')
    E(f'v_rcp_f32 v{vt[10]}, v{vt[10]}')
    E(f'v_mul_f32 v{vt[10]}, v{vt[8]}, v{vt[10]}')
    bf16r(vt[10], vt[10], vt[9])
    E(f'v_mov_b32_dpp v{vt[11]}, v{vt[8]} row_shl:8 row_mask:0xf bank_mask:0xf bound_ctrl:0')
    E(f'v_mul_f32 v{vt[10]}, v{vt[10]}, v{vt[11]}')
    pack_quad(vt[10])
    E(f'v_lshrrev_b32 v{vt[0]}, 4, v{vLANE}'); E(f'v_mul_u32_u24 v{vt[0]}, 6912, v{vt[0]}')
    E(f'v_and_b32 v{vt[1]}, 4, v{vLANE}'); E(f'v_lshl_add_u32 v{vt[0]}, v{vt[1]}, 2, v{vt[0]}')
    E(f's_lshl_b32 s{sT0}, s{sSIG}, 5'); E(f's_add_u32 s{sT0}, s{sT0}, {HBUF}')
    E(f's_mov_b32 exec_lo, 0x00110011'); E(f's_mov_b32 exec_hi, 0x00110011')
    a.vmem(f'buffer_store_dwordx4 v[{PUB}:{PUB+3}], v{vt[0]}, s[{D_WS}:{D_WS+3}], s{sT0} offen sc1', 'hpub', optional=True)
    E('s_mov_b64 exec, -1')
    a.label('L_NOHPUB')
def gate_issue():
    E(f's_mul_i32 s{sT0}, s{sB}, 1280')
    g_ops.append(a.vmem(f'buffer_load_dwordx4 v[{XG}:{XG+3}], v{vGOFF}, s[{D_X}:{D_X+3}], s{sT0} offen', 'xg'))
    g_ops.append(a.vmem(f'buffer_load_dword v{XG+4}, v{vGOFF}, s[{D_X}:{D_X+3}], s{sT0} offen offset:16', 'xg'))
    g_ops.append(a.vmem(f'buffer_load_dwordx4 v[{GWr}:{GWr+3}], v{vGOFF}, s[{D_GW}:{D_GW+3}], 0 offen', 'gw'))
    g_ops.append(a.vmem(f'buffer_load_dword v{GWr+4}, v{vGOFF}, s[{D_GW}:{D_GW+3}], 0 offen offset:16', 'gw'))
def gate_compute():
    a.wait_vm(g_ops[-1])
    gs = vt[8]
    E(f'v_mov_b32 v{gs}, 0')
    for k in range(5):
        xl, xh, wl, wh = vt[0], vt[1], vt[2], vt[3]
        E(f'v_lshlrev_b32 v{xl}, 16, v{XG+k}'); E(f'v_and_b32 v{xh}, s{sMASKHI}, v{XG+k}')
        E(f'v_lshlrev_b32 v{wl}, 16, v{GWr+k}'); E(f'v_and_b32 v{wh}, s{sMASKHI}, v{GWr+k}')
        E(f'v_mul_f32 v{xl}, v{xl}, v{wl}'); E(f'v_mul_f32 v{xh}, v{xh}, v{wh}')
        E(f'v_cvt_pk_bf16_f32 v{xl}, v{xl}, v{xh}')
        E(f'v_and_b32 v{xh}, s{sMASKHI}, v{xl}'); E(f'v_lshlrev_b32 v{xl}, 16, v{xl}')
        E(f'v_add_f32 v{gs}, v{gs}, v{xl}'); E(f'v_add_f32 v{gs}, v{gs}, v{xh}')
    wave_reduce('v_add_f32', gs, vt[0])
    bf16r(gs, gs, vt[0])
    E(f'v_mul_f32 v{gs}, 0xbfb8aa3b, v{gs}'); E(f'v_exp_f32 v{gs}, v{gs}'); E(f'v_add_f32 v{gs}, 1.0, v{gs}'); E(f'v_rcp_f32 v{gs}, v{gs}')
    bf16r(vG, gs, vt[0])
    E(f'v_sub_f32 v{vOMG}, 1.0, v{vG}')
    bf16r(vOMG, vOMG, vt[0])
wd_ops = []; hg_op = [None]
def h_loads(track=True):
    t = f'buffer_load_dwordx4 v[{HG}:{HG+3}], v{vt[13]}, s[{D_WS}:{D_WS+3}], 0 offen sc1'
    return a.vmem(t, 'hg') if track else E(t)
def ffn2_issue():
    E(f'v_and_b32 v{vt[13]}, 3, v{vLANE}'); E(f'v_lshlrev_b32 v{vt[13]}, 6, v{vt[13]}'); E(f'v_add_u32 v{vt[13]}, s{sJ}, v{vt[13]}')
    E(f'v_min_u32 v{vt[13]}, 215, v{vt[13]}')
    E(f's_mul_i32 s{sT0}, s{sB}, 216'); E(f'v_add_u32 v{vt[13]}, s{sT0}, v{vt[13]}'); E(f'v_lshlrev_b32 v{vt[13]}, 5, v{vt[13]}')
    E(f's_lshr_b32 s{sT0}, s{sW}, 2'); E(f's_lshl_b32 s{sT0}, s{sT0}, 4'); E(f's_add_u32 s{sT0}, s{sT0}, {HBUF}')
    E(f'v_add_u32 v{vt[13]}, s{sT0}, v{vt[13]}')
    for k in range(4):
        E(f's_add_u32 s{sT0}, s{sJ}, {64*k}'); E(f's_lshl_b32 s{sT0}, s{sT0}, 3'); E(f's_add_u32 s{sT0}, s{sT0}, s{sW}')
        E(f's_mul_i32 s{sOFF}, s{sT0}, 1280')
        wd_ops.append(a.vmem(f'buffer_load_dwordx4 v[{A+4*k}:{A+4*k+3}], v{vL16}, s[{D_WD}:{D_WD+3}], s{sOFF} offen{pol(OPT["POL_WO"])}', 'wd'))
        wd_ops.append(a.vmem(f'buffer_load_dword v{A+16+k}, v{vL4}, s[{D_WD}:{D_WD+3}], s{sOFF} offen offset:1024{pol(OPT["POL_WO"])}', 'wd'))
    hg_op[0] = h_loads()
def ffn2_compute():
    a.wait_vm(hg_op[0])
    poll_check('H', [HG+2], lambda: h_loads(False))
    for k in range(4):
        E(f'v_readlane_b32 s{sT0}, v{HG}, {k}'); E(f'v_readlane_b32 s{sT1}, v{HG+1}, {k}')
        E(f's_bitcmp1_b32 s{sW}, 1'); E(f's_cselect_b32 s{sT0}, s{sT1}, s{sT0}')
        E(f's_lshl_b32 s{sT1}, s{sT0}, 16'); E(f's_and_b32 s{sT0}, s{sT0}, s{sMASKHI}')
        E(f's_bitcmp1_b32 s{sW}, 0'); E(f's_cselect_b32 s{sO+k}, s{sT0}, s{sT1}')
    for k in range(4):
        regs = [A+4*k, A+4*k+1, A+4*k+2, A+4*k+3, A+16+k]
        for d, r in enumerate(regs):
            E(f'v_lshlrev_b32 v{vt[0]}, 16, v{r}'); E(f'v_and_b32 v{vt[1]}, s{sMASKHI}, v{r}')
            if k == 0:
                E(f'v_mul_f32 v{ACC+2*d}, s{sO+k}, v{vt[0]}'); E(f'v_mul_f32 v{ACC+2*d+1}, s{sO+k}, v{vt[1]}')
            else:
                E(f'v_fmac_f32 v{ACC+2*d}, s{sO+k}, v{vt[0]}'); E(f'v_fmac_f32 v{ACC+2*d+1}, s{sO+k}, v{vt[1]}')
    for i in range(10): E(f'v_mul_f32 v{ACC+i}, v{ACC+i}, v{vOMG}')
wo_ops = {}
def wo_issue(rows):
    for rr in rows:
        E(f's_add_u32 s{sOFF}, s{sWOB}, {rr*1280}')
        wo_ops[(rr, 0)] = a.vmem(f'buffer_load_dwordx4 v[{WOX+4*rr}:{WOX+4*rr+3}], v{vL16}, s[{D_WO}:{D_WO+3}], s{sOFF} offen{pol(OPT["POL_WO"])}', 'wo')
        wo_ops[(rr, 1)] = a.vmem(f'buffer_load_dword v{WOD+rr}, v{vL4}, s[{D_WO}:{D_WO+3}], s{sOFF} offen offset:1024{pol(OPT["POL_WO"])}', 'wo')
WP = {}
wo_free = [WOSP]
def wo_perm(k):
    a.wait_vm(wo_ops[(2*k+1, 1)])
    for d in range(5):
        ra = WOX+4*(2*k)+d if d < 4 else WOD+2*k
        rb = WOX+4*(2*k+1)+d if d < 4 else WOD+2*k+1
        dst = wo_free.pop()
        E(f'v_perm_b32 v{dst}, v{rb}, v{ra}, s{sSELLO}')
        E(f'v_perm_b32 v{rb}, v{rb}, v{ra}, s{sSELHI}')
        WP[(k, d, 0)] = dst; WP[(k, d, 1)] = rb
        wo_free.append(ra)

def refill(u):
    n = u + D
    if n < 32 and n not in issued: issue_chunk(n)
def prio(u):
    if OPT['PRIO'] and u % 8 == 0: E(f's_setprio {3 - u//8}')

for n in range(D):
    if n not in issued: issue_chunk(n)
for c in range(16):
    u = c
    prio(u)
    a.wait_vm(ring_ops[(u, 3)])
    base = RING + (u % 4)*16
    for j in range(4):
        for l in range(4):
            cs = '0' if j == 0 else f'v{T+l}'
            E(f'v_dot2_f32_bf16 v{T+l}, v{base+4*l+j}, v{Q[j]}, {cs}')
    refill(u)
    E(f'v_add_f32_dpp v{U0}, v{T}, v{T} row_ror:8 row_mask:0xf bank_mask:0x3')
    E(f'v_add_f32_dpp v{U1}, v{T+2}, v{T+2} row_ror:8 row_mask:0xf bank_mask:0x3')
    E(f'v_add_f32_dpp v{U0}, v{T+1}, v{T+1} row_ror:8 row_mask:0xf bank_mask:0xc')
    E(f'v_add_f32_dpp v{U1}, v{T+3}, v{T+3} row_ror:8 row_mask:0xf bank_mask:0xc')
    E(f'v_add_f32_dpp v{WW}, v{U0}, v{U0} row_half_mirror row_mask:0xf bank_mask:0x5')
    E(f'v_add_f32_dpp v{WW}, v{U1}, v{U1} row_half_mirror row_mask:0xf bank_mask:0xa')
    E(f'v_add_f32_dpp v{WW}, v{WW}, v{WW} quad_perm:[1,0,3,2] row_mask:0xf bank_mask:0xf')
    E(f'v_add_f32_dpp v{WW}, v{WW}, v{WW} quad_perm:[2,3,0,1] row_mask:0xf bank_mask:0xf')
    it, cc = c // 4, c % 4
    if cc == 0: E(f'v_mov_b32 v{S+it}, v{WW}')
    else: E(f'v_cndmask_b32 v{S+it}, v{S+it}, v{WW}, s[{sQM[cc]}:{sQM[cc]+1}]')
    if c == 0:
        code_prefetch(8192); ffn1_x()
    if c == 1: ffn1_w(0, 0, 5)
    if c == 2: ffn1_w(0, 5, 10)
    if c == 3: ffn1_w(1, 0, 5)
    if c == 4: ffn1_w(1, 5, 10); gate_issue()
    if c == 6: ffn1_compute(); gate_compute()
    if 7 <= c <= 14: wo_issue([2*(c-7), 2*(c-7)+1])
    if c == 12: ffn2_issue()
    if c == 15: ffn2_compute()
stamp('Kend')
for i in range(0, 4, 2): E(f'v_cvt_pk_bf16_f32 v{vt[i]}, v{S+i}, v{S+i+1}')
for i in range(0, 4, 2):
    E(f'v_lshlrev_b32 v{S+i}, 16, v{vt[i]}'); E(f'v_and_b32 v{S+i+1}, s{sMASKHI}, v{vt[i]}')
for i in range(4): E(f'v_mul_f32 v{S+i}, 0x3db504f3, v{S+i}')
for i in range(0, 4, 2): E(f'v_cvt_pk_bf16_f32 v{vt[i]}, v{S+i}, v{S+i+1}')
for i in range(0, 4, 2):
    E(f'v_lshlrev_b32 v{S+i}, 16, v{vt[i]}'); E(f'v_and_b32 v{S+i+1}, s{sMASKHI}, v{vt[i]}')
E(f'v_max_f32 v{vM}, v{S}, v{S+1}'); E(f'v_max3_f32 v{vM}, v{vM}, v{S+2}, v{S+3}')
wave_reduce('v_max_f32', vM, vt[0])
E(f's_mov_b32 s{sT0}, {LOG2E:#x}')
for i in range(4): E(f'v_sub_f32 v{S+i}, v{S+i}, v{vM}')
for i in range(4): E(f'v_mul_f32 v{S+i}, s{sT0}, v{S+i}')
for i in range(4): E(f'v_exp_f32 v{S+i}, v{S+i}')
E(f'v_add_f32 v{vLS}, v{S}, v{S+1}'); E(f'v_add_f32 v{vt[1]}, v{S+2}, v{S+3}'); E(f'v_add_f32 v{vLS}, v{vLS}, v{vt[1]}')
wave_reduce('v_add_f32', vLS, vt[0])
E(f'v_mov_b32 v{PUB}, v{vM}'); E(f'v_mov_b32 v{PUB+1}, v{vLS}')
E(f's_lshl_b32 s{sT0}, s{sB}, 5'); E(f's_add_u32 s{sT0}, s{sT0}, s{sH}'); E(f's_lshl_b32 s{sT0}, s{sT0}, 4')
E(f's_lshl_b32 s{sT1}, s{sS}, 3'); E(f's_add_u32 s{sT0}, s{sT0}, s{sT1}'); E(f's_add_u32 s{sT0}, s{sT0}, s{sW}')
E(f's_lshl_b32 s{sT0}, s{sT0}, 4'); E(f's_add_u32 s{sT0}, s{sT0}, {MLBUF}')
E(f'v_mov_b32 v{vt[0]}, 0')
E('s_mov_b64 exec, 1')
a.vmem(f'buffer_store_dwordx4 v[{PUB}:{PUB+3}], v{vt[0]}, s[{D_WS}:{D_WS+3}], s{sT0} offen sc1', 'mlpub')
E('s_mov_b64 exec, -1')
for i in range(8): E(f'v_mov_b32 v{A+i}, 0')

ml_op = [None]
def ml_loads(track=True):
    t = f'buffer_load_dwordx4 v[{ML}:{ML+3}], v{vMLADDR}, s[{D_WS}:{D_WS+3}], 0 offen sc1'
    return a.vmem(t, 'ml') if track else E(t)
for c in range(16):
    u = 16 + c
    prio(u)
    it, cc = c // 4, c % 4
    base = RING + (u % 4)*16
    fine = c >= 14
    if not fine: a.wait_vm(ring_ops[(u, 3)])
    for l in range(4):
        if fine: a.wait_vm(ring_ops[(u, l)])
        tb = TMP + (l % 2)*8
        for j in range(4):
            E(f'v_lshlrev_b32 v{tb+2*j}, 16, v{base+4*l+j}')
            E(f'v_and_b32 v{tb+2*j+1}, s{sMASKHI}, v{base+4*l+j}')
        if l == 3: refill(u)
        n = 4*BETA[l] + cc
        for j in range(8):
            E(f'v_fmac_f32_dpp v{A+j}, v{S+it}, v{tb+j} row_newbcast:{n} row_mask:0xf bank_mask:0xf')
    if c < 8: wo_perm(c)
    if c == 11: ml_op[0] = ml_loads()
    if c == 10 and OPT['TAILPF'] and OPT['PREFETCH_CODE']:
        E(f'v_lshlrev_b32 v{vt[0]}, 7, v{vLANE}'); E(f'v_add_u32 v{vt[0]}, L_TAIL-L_PCREF, v{vt[0]}')
        E(f'v_min_u32 v{vt[0]}, L_CODE_END-L_PCREF-4, v{vt[0]}')
        a.vmem(f'global_load_dword v{vDUM}, v{vt[0]}, s[{sPC}:{sPC+1}]', 'codepf')
stamp('Vend')
a.raw('L_TAIL:')
a.wait_vm(ml_op[0])
poll_check('ML', [ML+2], lambda: ml_loads(False))
stamp('MLok')
mM, mE = vt[0], vt[1]
E(f'v_mov_b32 v{mM}, v{ML}')
row_reduce('v_max_f32', mM)
E(f's_mov_b32 s{sT0}, {LOG2E:#x}')
E(f'v_sub_f32 v{mE}, v{ML}, v{mM}'); E(f'v_sub_f32 v{vt[2]}, v{vM}, v{mM}')
E(f'v_mul_f32 v{mE}, s{sT0}, v{mE}'); E(f'v_mul_f32 v{vt[2]}, s{sT0}, v{vt[2]}')
E(f'v_exp_f32 v{mE}, v{mE}'); E(f'v_exp_f32 v{vt[2]}, v{vt[2]}')
E(f'v_mul_f32 v{mE}, v{mE}, v{ML+1}')
row_reduce('v_add_f32', mE)
E(f'v_rcp_f32 v{mE}, v{mE}')
E(f'v_mul_f32 v{vt[2]}, v{vt[2]}, v{vG}')
E(f'v_mul_f32 v{vt[2]}, v{vt[2]}, v{mE}')
for i in range(8): E(f'v_mul_f32 v{A+i}, v{A+i}, v{vt[2]}')
for i in range(4): E(f'v_permlane32_swap_b32 v{A+i}, v{A+4+i}')
for i in range(4): E(f'v_add_f32 v{A+i}, v{A+i}, v{A+4+i}')
for i in range(2): E(f'v_permlane16_swap_b32 v{A+i}, v{A+2+i}')
for i in range(2): E(f'v_add_f32 v{A+i}, v{A+i}, v{A+2+i}')
E(f'v_and_b32 v{vt[0]}, 15, v{vLANE}'); E(f'v_lshrrev_b32 v{vt[1]}, 4, v{vLANE}'); E(f'v_lshl_add_u32 v{vt[0]}, v{vt[0]}, 2, v{vt[1]}')
E(f'v_lshlrev_b32 v{vt[0]}, 3, v{vt[0]}'); E(f's_mul_i32 s{sT0}, s{sW}, {OB_STRIDE}'); E(f'v_add_u32 v{vt[0]}, s{sT0}, v{vt[0]}')
E(f'ds_write_b64 v{vt[0]}, v[{A}:{A+1}] offset:{L_OB}')
E(f'v_lshrrev_b32 v{vt[1]}, 3, v{vLANE}'); E(f'v_mul_u32_u24 v{vt[1]}, {OB_STRIDE}, v{vt[1]}')
E(f'v_and_b32 v{vt[2]}, 7, v{vLANE}'); E(f'v_lshl_add_u32 v{vt[1]}, v{vt[2]}, 3, v{vt[1]}')
E(f's_lshl_b32 s{sT0}, s{sW}, 6'); E(f'v_add_u32 v{vt[1]}, s{sT0}, v{vt[1]}')
E('s_waitcnt lgkmcnt(0)')
stamp('preT1')
E('s_barrier')
stamp('postT1')
E(f'ds_read_b64 v[{vt[2]}:{vt[3]}], v{vt[1]} offset:{L_OB}')
E('s_waitcnt lgkmcnt(0)')
pr = ((vt[2], vt[4]), (vt[3], vt[5]))
for r, t in pr: E(f'v_add_f32_dpp v{r}, v{r}, v{r} row_ror:8 row_mask:0xf bank_mask:0xf')
for r, t in pr: E(f'v_mov_b32 v{t}, v{r}')
for r, t in pr: E(f'v_permlane16_swap_b32 v{t}, v{r}')
for r, t in pr: E(f'v_add_f32 v{r}, v{r}, v{t}'); E(f'v_mov_b32 v{t}, v{r}')
for r, t in pr: E(f'v_permlane32_swap_b32 v{t}, v{r}')
for r, t in pr: E(f'v_add_f32 v{r}, v{r}, v{t}')
E(f'v_cvt_pk_bf16_f32 v{vt[2]}, v{vt[2]}, v{vt[3]}')
for k in range(8): E(f'v_readlane_b32 s{sO+k}, v{vt[2]}, {k}')
for k in range(8):
    for d in range(5):
        for par in (0, 1):
            E(f'v_dot2c_f32_bf16 v{ACC+2*d+par}, s{sO+k}, v{WP[(k, d, par)]}')
stamp('afterdot')
E(f'v_mul_u32_u24 v{vt[0]}, 40, v{vLANE}'); E(f's_mul_i32 s{sT0}, s{sW}, {RB_STRIDE}'); E(f'v_add_u32 v{vt[0]}, s{sT0}, v{vt[0]}')
for d in range(5):
    E(f'ds_write_b64 v{vt[0]}, v[{ACC+2*d}:{ACC+2*d+1}] offset:{L_RB+8*d}')
E('s_waitcnt lgkmcnt(0)')
E('s_barrier')
stamp('postT2')
E(f's_cmp_ge_u32 s{sW}, 5'); E('s_cbranch_scc1 L_END5')
E(f'v_lshlrev_b32 v{vt[0]}, 3, v0')
RD = TMP
for w in range(8):
    E(f'ds_read_b64 v[{RD+2*w}:{RD+2*w+1}], v{vt[0]} offset:{L_RB + w*RB_STRIDE}')
E(f's_lshl_b32 s{sT0}, s{sB}, 6'); E(f's_add_u32 s{sT0}, s{sT0}, s{sJ}'); E(f's_mul_i32 s{sT0}, s{sT0}, 5120'); E(f's_add_u32 s{sT0}, s{sT0}, {PBUF}')
E(f'v_lshlrev_b32 v{vt[1]}, 4, v0')
E(f'v_mul_u32_u24 v{vt[13]}, 5120, v{vLANE}')
E(f's_mul_i32 s{sT2}, s{sB}, {64*5120}'); E(f's_mul_i32 s{sT1}, s{sJ}, 5'); E(f's_add_u32 s{sT1}, s{sT1}, s{sW}'); E(f's_lshl_b32 s{sT1}, s{sT1}, 4')
E(f's_add_u32 s{sT2}, s{sT2}, s{sT1}'); E(f's_add_u32 s{sT2}, s{sT2}, {PBUF}'); E(f'v_add_u32 v{vt[13]}, s{sT2}, v{vt[13]}')
E('s_waitcnt lgkmcnt(0)')
for st in (1, 2, 4):
    for w in range(0, 8, 2*st):
        for p in (0, 1):
            dst = PUB + p if (st == 4) else RD+2*w+p
            E(f'v_add_f32 v{dst}, v{RD+2*w+p}, v{RD+2*(w+st)+p}')
a.vmem(f'buffer_store_dwordx4 v[{PUB}:{PUB+3}], v{vt[1]}, s[{D_WS}:{D_WS+3}], s{sT0} offen sc1', 'ppub')
stamp('ppub')
def p_loads(track=True):
    t = f'buffer_load_dwordx4 v[{ML}:{ML+3}], v{vt[13]}, s[{D_WS}:{D_WS+3}], 0 offen sc1'
    return a.vmem(t, 'pg') if track else E(t)
pop = p_loads()
a.wait_vm(pop)
stamp('poll1')
poll_check('P', [ML+2], lambda: p_loads(False))
stamp('pollok')
for r in (8, 4, 2, 1):
    for p in (0, 1):
        E(f'v_add_f32_dpp v{ML+p}, v{ML+p}, v{ML+p} row_ror:{r} row_mask:0xf bank_mask:0xf')
for sw in ('v_permlane16_swap_b32', 'v_permlane32_swap_b32'):
    for p in (0, 1): E(f'v_mov_b32 v{vt[p]}, v{ML+p}')
    for p in (0, 1): E(f'{sw} v{vt[p]}, v{ML+p}')
    for p in (0, 1): E(f'v_add_f32 v{ML+p}, v{ML+p}, v{vt[p]}')
E(f'v_cvt_pk_bf16_f32 v{vt[2]}, v{ML}, v{ML+1}')
E(f's_lshl_b32 s{sT0}, s{sJ}, 4'); E(f's_lshl_b32 s{sT1}, s{sW}, 2'); E(f's_add_u32 s{sT0}, s{sT0}, s{sT1}')
E(f's_lshl_b32 s{sT1}, s{sJ}, 2'); E(f's_add_u32 s{sT1}, s{sT1}, 1024')
E(f's_cmp_eq_u32 s{sW}, 4'); E(f's_cselect_b32 s{sT0}, s{sT1}, s{sT0}')
E(f's_mul_i32 s{sT1}, s{sB}, 1280'); E(f's_add_u32 s{sT0}, s{sT0}, s{sT1}')
E(f'v_mov_b32 v{vt[0]}, 0')
E('s_mov_b64 exec, 1')
a.vmem(f'buffer_store_dword v{vt[2]}, v{vt[0]}, s[{D_OUT}:{D_OUT+3}], s{sT0} offen', 'out')
E(f's_or_b32 s{sT0}, s2, s{sW}'); E(f's_cmp_lg_u32 s{sT0}, 0'); E('s_cbranch_scc1 L_FIN')
a.vmem(f'buffer_store_dwordx2 v[{PUB+2}:{PUB+3}], v{vt[0]}, s[{D_WS}:{D_WS+3}], 0 offen sc1', 'epoch', optional=True)
a.label('L_FIN')
stamp('end')
stamp_flush()
E('s_waitcnt vmcnt(0)')
a.raw('L_END:')
E('s_endpgm')
a.raw('L_END5:'); a.barrier_hist()
stamp_flush()
E('s_endpgm')
for sp in slow_paths: sp()
a.raw('L_CODE_END:')
E('s_endpgm')
a.raw('.section .rodata,"a"'); a.raw('.p2align 6'); a.raw(f'.amdhsa_kernel {NAME}_kernel')
a.raw('  .amdhsa_next_free_vgpr 256'); a.raw('  .amdhsa_next_free_sgpr 102'); a.raw('  .amdhsa_accum_offset 256')
a.raw('  .amdhsa_group_segment_fixed_size 0'); a.raw('  .amdhsa_kernarg_size 104'); a.raw('  .amdhsa_user_sgpr_count 2')
a.raw('  .amdhsa_user_sgpr_kernarg_segment_ptr 1'); a.raw('  .amdhsa_system_sgpr_workgroup_id_x 1'); a.raw('.end_amdhsa_kernel')
out = sys.argv[1] if len(sys.argv) > 1 else 'cdna_kernels/' + NAME + '.s'
open(out, 'w').write(a.text())
print('wrote', out, 'lines', len(a.lines), 'auto nops', a.nops)
```

```python
import sys
from asmlib import Asm

NAME = 'gated_mix__mha_block_cached__swiglu_ffn__decode'
HEADER = open('cdna_kernels/' + NAME + '.s.ref').read().split('; Override launch')[0]

OPT = dict(POL_KV='nt', POL_WQ='', POL_W='', POL_WO='', PREFETCH_CODE=1, STAMPS=0, SPIN_LIMIT=1 << 17, D=3, PRIO=1,
           PFW=3, TAILPF=1, MLC=10, DUAL=0, WOC0=2, F2C=12, NOWO=0, NOFFN=0, PURE=0, NOCOMP=0, KVMAP=0, NODMA=0, NOML=0, SPACE=0, OUTSC1=1, DBGT=0)
for a_ in sys.argv[2:]:
    k, v = a_.split('=')
    OPT[k] = v if k.startswith('POL') else int(v)
def pol(p): return (' ' + p) if p else ''
D = OPT['D']

QPA = 0x1000; QPB = 0x101000
FP = 0x201000
MLBUF = 0x2E0000
PBUF = 0x2F0000
WS_SIZE = 0x4F0000
STAMPBUF = 0x500000
L_XL = 0; L_G = 640; L_QS = 1024; L_QB = 5120; L_OB = 7168; OB_STRIDE = 576
L_RB = 11776; RB_STRIDE = 2560; L_FR = 32256; L_WQ = 32768; L_FG = 53248; L_FU = 63488
LDS_BYTES = 83968

S_X, S_K, S_V, S_WQ, S_WO, S_WG, S_WU, S_WD, S_GW, S_OUT, S_DBG, S_WS = 4, 6, 8, 10, 12, 16, 18, 20, 22, 24, 26, 28
D_K, D_V, D_WQ, D_X, D_WO, D_WD, D_GW, D_WS, D_OUT = 32, 36, 40, 44, 48, 52, 56, 60, 64
sW, sH, sB, sBS, sS, sJ, sOFF = 68, 69, 70, 71, 72, 73, 75
sTAG = 76
sMASKHI, sSELLO, sSELHI = 78, 79, 80
sQM = [None, 82, 84, 86]
sO = 88
D_F = 88
sGM = [None, 90, 92, 94]
sT0, sT1, sT2, sT3 = 96, 97, 98, 99
sSPIN = 100
sWOB = 30
sRF = 31
sPC = 0
vLANE, vKOFF, vL16, vL4, vDUM = 1, 2, 3, 4, 5
vDMA, vQADDR, vMLADDR, vGOFF = 7, 8, 9, 10
RING = 16
WOX = 80; WOD = 144; WOSP = 160
ACC = 164; A = 174; TMP = 182
G0 = 198; G1 = 202
S = 206; T = 210; U0, U1, WW = 214, 215, 216
vFAC = 217
ML = 218; HG = 222; PUB = 226
vG, vOMG, vM, vLS = 230, 231, 232, 233
vt = [234 + i for i in range(14)]
vSTAMP = 248
FGR = [218, 222, 194, 250]
XG = 140; GWr = 146

a = Asm()
E = a.emit
LOG2E = 0x3fb8aa3b

def srd(d, lo, hi, size, add=None):
    if add is None:
        E(f's_mov_b32 s{d}, s{lo}'); E(f's_and_b32 s{d+1}, s{hi}, 0xffff')
    else:
        E(f's_add_u32 s{d}, s{lo}, s{add}'); E(f's_addc_u32 s{d+1}, s{hi}, 0'); E(f's_and_b32 s{d+1}, s{d+1}, 0xffff')
    if isinstance(size, int): E(f's_mov_b32 s{d+2}, {size}')
    else: E(size)
    E(f's_mov_b32 s{d+3}, 0x20000')

def bf16r(dst, src, tmp):
    E(f'v_cvt_pk_bf16_f32 v{tmp}, v{src}, v{src}')
    E(f'v_lshlrev_b32 v{dst}, 16, v{tmp}')

def row_reduce(op, v):
    for r in (8, 4, 2, 1):
        E(f'{op}_dpp v{v}, v{v}, v{v} row_ror:{r} row_mask:0xf bank_mask:0xf')

def wave_reduce(op, v, t):
    row_reduce(op, v)
    E(f'v_mov_b32 v{t}, v{v}'); E(f'v_permlane16_swap_b32 v{t}, v{v}'); E(f'{op} v{v}, v{v}, v{t}')
    E(f'v_mov_b32 v{t}, v{v}'); E(f'v_permlane32_swap_b32 v{t}, v{v}'); E(f'{op} v{v}, v{v}, v{t}')

def reduce_bits345(regs, tmps):
    for r in regs: E(f'v_add_f32_dpp v{r}, v{r}, v{r} row_ror:8 row_mask:0xf bank_mask:0xf')
    for sw in ('v_permlane16_swap_b32', 'v_permlane32_swap_b32'):
        for r, t in zip(regs, tmps): E(f'v_mov_b32 v{t}, v{r}')
        for r, t in zip(regs, tmps): E(f'{sw} v{t}, v{r}')
        for r, t in zip(regs, tmps): E(f'v_add_f32 v{r}, v{r}, v{t}')

slow_paths = []
def tagcmp(tagregs, lanemask=None):
    E(f'v_cmp_eq_u64 vcc, s[{sTAG}:{sTAG+1}], v[{tagregs[0]}:{tagregs[0]+1}]')
    for t in tagregs[1:]:
        E(f'v_cmp_eq_u64 s[{sT0}:{sT0+1}], s[{sTAG}:{sTAG+1}], v[{t}:{t+1}]')
        E(f's_and_b64 vcc, vcc, s[{sT0}:{sT0+1}]')
    if lanemask is None: E('s_cmp_eq_u64 vcc, -1')
    else: E(f's_cmp_eq_u64 vcc, s[{lanemask}:{lanemask+1}]')
def add_slow(name, cmpf, reissue, sleep=1):
    def slow():
        a.raw(f'L_SLOW_{name}:'); a.barrier_hist()
        E(f's_mov_b32 s{sSPIN}, 0')
        a.raw(f'L_SLOWLOOP_{name}:'); a.barrier_hist()
        E(f's_add_u32 s{sSPIN}, s{sSPIN}, 1')
        E(f's_cmp_gt_u32 s{sSPIN}, {OPT["SPIN_LIMIT"]}')
        E(f's_cbranch_scc1 L_GIVEUP_{name}')
        if sleep: E(f's_sleep {sleep}')
        reissue()
        E('s_waitcnt vmcnt(0)')
        cmpf()
        E(f's_cbranch_scc0 L_SLOWLOOP_{name}')
        a.raw(f'L_GIVEUP_{name}:'); a.barrier_hist()
        E('s_nop 4')
        E(f's_branch L_OK_{name}')
    slow_paths.append(slow)
def poll_check(name, cmpf, reissue, sleep=1):
    cmpf()
    E(f's_cbranch_scc0 L_SLOW_{name}')
    a.label(f'L_OK_{name}')
    add_slow(name, cmpf, reissue, sleep)

PROFILES = {1: ['entry','kernarg','issued','dmawait','barA','qpub','fpub','q1ret','qready','Kend','Vend','ppub','end'],
            2: ['entry','qready','Kend','Vend','preT1','postT1','afterdot','postT2','ppub','poll1','pollok','postT3','end']}
def stamp(nm):
    if not OPT['STAMPS']: return
    if nm not in PROFILES[OPT['STAMPS']]: return
    i = PROFILES[OPT['STAMPS']].index(nm)
    E(f's_memrealtime s[{sT2}:{sT3}]'); E('s_waitcnt lgkmcnt(0)')
    E(f'v_writelane_b32 v{vSTAMP}, s{sT2}, {i}')
def stamp_flush():
    if not OPT['STAMPS']: return
    E(f's_lshl_b32 s{sT2}, s2, 3'); E(f's_add_u32 s{sT2}, s{sT2}, s{sW}'); E(f's_lshl_b32 s{sT2}, s{sT2}, 6')
    E(f's_add_u32 s{sT2}, s{sT2}, {STAMPBUF}')
    E('s_mov_b64 exec, 0xffff')
    E(f'v_mbcnt_lo_u32_b32 v{vSTAMP+1}, -1, 0'); E(f'v_lshlrev_b32 v{vSTAMP+1}, 2, v{vSTAMP+1}'); E(f'v_add_u32 v{vSTAMP+1}, s{sT2}, v{vSTAMP+1}')
    E(f'global_store_dword v{vSTAMP+1}, v{vSTAMP}, s[{S_WS}:{S_WS+1}]')

a.raw(HEADER.rstrip())
a.raw('; Override launch geometry by editing the next line.')
a.raw(f'; @launch grid=(256,1,1) block=(512,1,1) lds={LDS_BYTES}')
a.raw('.amdgcn_target "amdgcn-amd-amdhsa--gfx950"')
a.raw('.text'); a.raw(f'.globl {NAME}_kernel'); a.raw('.p2align 8'); a.raw(f'.type {NAME}_kernel,@function')
a.raw(f'{NAME}_kernel:')
E('s_cmp_ge_u32 s2, 256')
E('s_cbranch_scc1 L_END')
stamp('entry')
if OPT['DBGT']:
    E('s_memrealtime s[100:101]'); E('s_memtime s[102:103]' if False else 's_nop 0')
    E('s_waitcnt lgkmcnt(0)'); E(f'v_mov_b32 v254, s100')
    E('s_memtime s[100:101]'); E('s_waitcnt lgkmcnt(0)'); E(f'v_mov_b32 v255, s100')
E('s_load_dwordx16 s[4:19], s[0:1], 0')
E('s_load_dwordx8 s[20:27], s[0:1], 64')
E('s_load_dwordx2 s[28:29], s[0:1], 96')
E(f'v_and_b32 v{vLANE}, 63, v0')
E(f'v_lshrrev_b32 v{vt[0]}, 6, v0')
if OPT['PREFETCH_CODE']:
    E(f's_getpc_b64 s[{sPC}:{sPC+1}]')
    a.raw('L_PCREF:')
    E(f'v_cmp_eq_u32 vcc, {OPT["PFW"]}, v{vt[0]}')
    E('s_and_saveexec_b64 s[30:31], vcc')
    E('s_cbranch_execz L_NOPF')
    E(f'v_lshlrev_b32 v{vt[1]}, 7, v{vLANE}')
    E(f'global_load_dword v{vDUM}, v{vt[1]}, s[{sPC}:{sPC+1}]')
    a.label('L_NOPF')
    E('s_mov_b64 exec, -1')
def code_prefetch(base):
    if not OPT['PREFETCH_CODE']: return
    E(f's_lshl_b32 s{sT0}, s{sW}, 13'); E(f's_add_u32 s{sT0}, s{sT0}, {base}')
    E(f'v_lshlrev_b32 v{vt[0]}, 7, v{vLANE}'); E(f'v_add_u32 v{vt[0]}, s{sT0}, v{vt[0]}')
    E(f'v_min_u32 v{vt[0]}, L_CODE_END-L_PCREF-4, v{vt[0]}')
    a.vmem(f'global_load_dword v{vDUM}, v{vt[0]}, s[{sPC}:{sPC+1}]', 'codepf')
E(f'v_readfirstlane_b32 s{sW}, v{vt[0]}')
E(f's_and_b32 s{sT0}, s2, 7')
E(f's_lshr_b32 s{sT2}, s2, 3')
E(f's_and_b32 s{sT1}, s{sT2}, 3')
E(f's_lshl_b32 s{sH}, s{sT0}, 2'); E(f's_add_u32 s{sH}, s{sH}, s{sT1}')
E(f's_lshr_b32 s{sBS}, s{sT2}, 2'); E(f's_lshr_b32 s{sB}, s{sBS}, 1'); E(f's_and_b32 s{sS}, s{sBS}, 1')
E(f's_lshl_b32 s{sJ}, s{sH}, 1'); E(f's_add_u32 s{sJ}, s{sJ}, s{sS}')
E(f'v_lshlrev_b32 v{vL16}, 4, v{vLANE}'); E(f'v_lshlrev_b32 v{vL4}, 2, v{vLANE}')
E(f's_lshl_b32 s{sT1}, s{sW}, 12'); E(f'v_add_u32 v{vKOFF}, s{sT1}, v{vL16}')
sKVO = 74
E(f's_lshl_b32 s{sKVO}, s{sB}, 5'); E(f's_add_u32 s{sKVO}, s{sKVO}, s{sH}'); E(f's_lshl_b32 s{sKVO}, s{sKVO}, 20')
E(f's_lshl_b32 s{sOFF}, s{sS}, 19'); E(f's_add_u32 s{sKVO}, s{sKVO}, s{sOFF}')
if OPT['KVMAP'] == 1: E(f's_lshl_b32 s{sKVO}, s2, 19')
sROW = sSPIN
E(f's_cmp_ge_u32 s{sW}, 4'); E('s_cbranch_scc1 L_SETUP_HI')
E(f'v_lshrrev_b32 v{vt[1]}, 4, v{vLANE}'); E(f'v_lshlrev_b32 v{vt[1]}, 13, v{vt[1]}')
E(f'v_and_b32 v{vt[2]}, 15, v{vLANE}'); E(f'v_lshl_add_u32 v{vDMA}, v{vt[2]}, 4, v{vt[1]}')
E(f's_mul_i32 s{sROW}, s{sBS}, 80'); E(f's_mul_i32 s{sOFF}, s{sW}, 20')
E(f's_add_u32 s{sROW}, s{sROW}, s{sOFF}'); E(f's_lshl_b32 s{sROW}, s{sROW}, 13')
E(f'v_mul_u32_u24 v{vt[3]}, 205, v{vLANE}'); E(f'v_lshrrev_b32 v{vt[3]}, 11, v{vt[3]}')
E(f'v_mul_u32_u24 v{vt[4]}, 10, v{vt[3]}'); E(f'v_sub_u32 v{vt[4]}, v{vLANE}, v{vt[4]}')
E(f'v_mul_u32_u24 v{vt[3]}, 1280, v{vt[3]}'); E(f'v_lshl_add_u32 v{vt[3]}, v{vt[4]}, 4, v{vt[3]}')
E(f's_mul_i32 s{sT1}, s{sBS}, 160'); E(f'v_add_u32 v{vt[3]}, s{sT1}, v{vt[3]}')
E(f's_lshl_b32 s{sT0}, s{sH}, 8')
E(f's_mul_i32 s{sT2}, s{sW}, {20*256}'); E(f's_add_u32 s{sT2}, s{sT2}, {L_WQ}')
E('s_waitcnt lgkmcnt(0)')
stamp('kernarg')
if OPT['STAMPS'] == 1:
    E(f's_mul_i32 s{sT2}, s{sW}, {20*256}'); E(f's_add_u32 s{sT2}, s{sT2}, {L_WQ}')
srd(D_WQ, S_WQ, S_WQ+1, f's_sub_u32 s{D_WQ+2}, 5242880, s{sT0}', add=sT0)
for i in range(5 if not OPT['NODMA'] else 0):
    E(f's_add_u32 m0, s{sT2}, {i*1024}')
    E(f's_add_u32 s{sOFF}, s{sROW}, {i*4*8192}')
    E(f'buffer_load_dwordx4 v{vDMA}, s[{D_WQ}:{D_WQ+3}], s{sOFF} offen{pol(OPT["POL_WQ"])} lds')
srd(D_X, S_X, S_X+1, 5120)
E(f's_cmp_lg_u32 s{sW}, 0'); E('s_cbranch_scc1 L_SETUP_J')
E(f's_mov_b32 m0, {L_XL}')
E('s_mov_b32 exec_lo, -1'); E('s_mov_b32 exec_hi, 0xff')
E(f'buffer_load_dwordx4 v{vt[3]}, s[{D_X}:{D_X+3}], 0 offen lds')
E('s_mov_b64 exec, -1')
E('s_branch L_SETUP_J')
a.label('L_SETUP_HI')
E(f'v_lshrrev_b32 v{vt[1]}, 3, v{vLANE}'); E(f'v_mul_u32_u24 v{vt[1]}, 3456, v{vt[1]}')
E(f'v_and_b32 v{vt[2]}, 7, v{vLANE}'); E(f'v_lshl_add_u32 v{vDMA}, v{vt[2]}, 4, v{vt[1]}')
E(f's_mul_i32 s{sROW}, s{sBS}, 80'); E(f's_and_b32 s{sOFF}, s{sW}, 1'); E(f's_mul_i32 s{sOFF}, s{sOFF}, 40')
E(f's_add_u32 s{sROW}, s{sROW}, s{sOFF}'); E(f's_mul_i32 s{sROW}, s{sROW}, 3456')
E(f's_lshl_b32 s{sT0}, s{sH}, 7')
E(f's_and_b32 s{sT2}, s{sW}, 1'); E(f's_mul_i32 s{sT2}, s{sT2}, {40*128}')
E(f's_add_u32 s{sT1}, s{sT2}, {L_FG}'); E(f's_add_u32 s{sT2}, s{sT2}, {L_FU}')
E(f's_cmp_ge_u32 s{sW}, 6'); E(f's_cselect_b32 s{sT2}, s{sT2}, s{sT1}')
E('s_waitcnt lgkmcnt(0)')
stamp('kernarg')
if OPT['STAMPS'] == 1:
    E(f's_and_b32 s{sT2}, s{sW}, 1'); E(f's_mul_i32 s{sT2}, s{sT2}, {40*128}')
    E(f's_add_u32 s{sT1}, s{sT2}, {L_FG}'); E(f's_add_u32 s{sT2}, s{sT2}, {L_FU}')
    E(f's_cmp_ge_u32 s{sW}, 6'); E(f's_cselect_b32 s{sT2}, s{sT2}, s{sT1}')
srd(D_X, S_X, S_X+1, 5120)
E(f's_cmp_ge_u32 s{sH}, 27'); E('s_cbranch_scc1 L_SETUP_J')
E(f's_cmp_ge_u32 s{sW}, 6'); E(f's_cselect_b32 s{sT1}, s{S_WU}, s{S_WG}'); E(f's_cselect_b32 s{sT3}, s{S_WU+1}, s{S_WG+1}')
E(f's_add_u32 s{D_F}, s{sT1}, s{sT0}'); E(f's_addc_u32 s{D_F+1}, s{sT3}, 0'); E(f's_and_b32 s{D_F+1}, s{D_F+1}, 0xffff')
E(f's_sub_u32 s{D_F+2}, 2211840, s{sT0}'); E(f's_mov_b32 s{D_F+3}, 0x20000')
if not OPT['NOFFN']:
    for i in range(5):
        E(f's_add_u32 m0, s{sT2}, {i*1024}')
        E(f's_add_u32 s{sOFF}, s{sROW}, {i*8*3456}')
        E(f'buffer_load_dwordx4 v{vDMA}, s[{D_F}:{D_F+3}], s{sOFF} offen{pol(OPT["POL_W"])} lds')
a.label('L_SETUP_J')
srd(D_K, S_K, S_K+1, 524288, add=sKVO)
srd(D_V, S_V, S_V+1, 524288, add=sKVO)

ring_ops = {}
issued = set()
def issue_chunk(u, track=True):
    d = D_K if u < 16 else D_V
    c = u % 16
    if c == 0: so = '0'
    else: E(f's_mov_b32 s{sOFF}, {c*32768}'); so = f's{sOFF}'
    for l in range(4):
        r = RING + (u % 4)*16 + l*4
        off = f' offset:{l*1024}' if l else ''
        t = f'buffer_load_dwordx4 v[{r}:{r+3}], v{vKOFF}, s[{d}:{d+3}], {so} offen{off}{pol(OPT["POL_KV"])}'
        if track: ring_ops[(u, l)] = a.vmem(t, f'ring{u}')
        else: E(t)
    if track: issued.add(u)
E(f's_cmp_lt_u32 s{sW}, 4'); E('s_cbranch_scc1 L_NOC0')
issue_chunk(0, track=False)
E(f's_cmp_lg_u32 s{sW}, 5'); E('s_cbranch_scc1 L_NOC0')
srd(D_GW, S_GW, S_GW+1, 1280)
E(f'v_mul_u32_u24 v{vGOFF}, 20, v{vLANE}'); E(f's_mul_i32 s{sT0}, s{sB}, 1280')
E(f'buffer_load_dwordx4 v[{XG}:{XG+3}], v{vGOFF}, s[{D_X}:{D_X+3}], s{sT0} offen')
E(f'buffer_load_dword v{XG+4}, v{vGOFF}, s[{D_X}:{D_X+3}], s{sT0} offen offset:16')
E(f'buffer_load_dwordx4 v[{GWr}:{GWr+3}], v{vGOFF}, s[{D_GW}:{D_GW+3}], 0 offen')
E(f'buffer_load_dword v{GWr+4}, v{vGOFF}, s[{D_GW}:{D_GW+3}], 0 offen offset:16')
a.label('L_NOC0')
stamp('issued')
E(f's_load_dwordx2 s[{sTAG}:{sTAG+1}], s[{S_WS}:{S_WS+1}], 0')
E(f's_mov_b32 s{sMASKHI}, 0xffff0000'); E(f's_mov_b32 s{sSELLO}, 0x05040100'); E(f's_mov_b32 s{sSELHI}, 0x07060302')
srd(D_WS, S_WS, S_WS+1, WS_SIZE)
vBA, vAA, vQP, vFA, vFPUB = vt[5], vt[6], vt[7], vt[8], vt[9]
E(f'v_lshrrev_b32 v{vt[1]}, 2, v{vLANE}'); E(f'v_and_b32 v{vt[0]}, 3, v{vLANE}')
E(f'v_lshlrev_b32 v{vBA}, 8, v{vt[1]}'); E(f'v_lshl_add_u32 v{vBA}, v{vt[0]}, 3, v{vBA}')
E(f's_lshl_b32 s{sT0}, s{sW}, 5'); E(f's_add_u32 s{sT0}, s{sT0}, {L_WQ}'); E(f'v_add_u32 v{vBA}, s{sT0}, v{vBA}')
E(f'v_lshlrev_b32 v{vFA}, 7, v{vt[1]}'); E(f'v_lshl_add_u32 v{vFA}, v{vt[0]}, 3, v{vFA}')
E(f's_and_b32 s{sT0}, s{sW}, 3'); E(f's_lshl_b32 s{sT0}, s{sT0}, 5'); E(f's_add_u32 s{sT1}, s{sT0}, {L_FG}'); E(f's_add_u32 s{sT0}, s{sT0}, {L_FU}')
E(f's_cmp_ge_u32 s{sW}, 4'); E(f's_cselect_b32 s{sT0}, s{sT0}, s{sT1}'); E(f'v_add_u32 v{vFA}, s{sT0}, v{vFA}')
E(f'v_mul_u32_u24 v{vAA}, 160, v{vt[0]}'); E(f'v_lshrrev_b32 v{vt[1]}, 4, v{vLANE}'); E(f'v_lshl_add_u32 v{vAA}, v{vt[1]}, 3, v{vAA}')
E(f'v_lshlrev_b32 v{vQP}, 13, v{vt[1]}'); E(f'v_and_b32 v{vt[2]}, 14, v{vLANE}'); E(f'v_lshl_add_u32 v{vQP}, v{vt[2]}, 3, v{vQP}')
E(f's_lshl_b32 s{sT0}, s{sH}, 15'); E(f's_lshl_b32 s{sT1}, s{sBS}, 10'); E(f's_add_u32 s{sT0}, s{sT0}, s{sT1}')
E(f's_lshl_b32 s{sT1}, s{sW}, 7'); E(f's_add_u32 s{sT0}, s{sT0}, s{sT1}')
E(f'v_add_u32 v{vQP}, s{sT0}, v{vQP}')
E(f'v_mul_u32_u24 v{vFPUB}, {216*1024}, v{vt[1]}')
E(f'v_and_b32 v{vt[2]}, 8, v{vLANE}'); E(f'v_lshl_add_u32 v{vFPUB}, v{vt[2]}, 7, v{vFPUB}')
E(f'v_and_b32 v{vt[2]}, 6, v{vLANE}'); E(f'v_lshl_add_u32 v{vFPUB}, v{vt[2]}, 3, v{vFPUB}')
E(f's_lshl_b32 s{sT0}, s{sH}, 3'); E(f's_and_b32 s{sT1}, s{sW}, 3'); E(f's_lshl_b32 s{sT1}, s{sT1}, 1'); E(f's_add_u32 s{sT0}, s{sT0}, s{sT1}')
E(f's_lshl_b32 s{sT0}, s{sT0}, 10'); E(f's_lshl_b32 s{sT1}, s{sBS}, 7'); E(f's_add_u32 s{sT0}, s{sT0}, s{sT1}')
E(f's_lshr_b32 s{sT1}, s{sW}, 2'); E(f's_lshl_b32 s{sT1}, s{sT1}, 6'); E(f's_add_u32 s{sT0}, s{sT0}, s{sT1}'); E(f's_add_u32 s{sT0}, s{sT0}, {FP}')
E(f'v_add_u32 v{vFPUB}, s{sT0}, v{vFPUB}')
E(f's_lshl_b32 s{sT0}, s{sH}, 15'); E(f's_lshl_b32 s{sT1}, s{sB}, 13'); E(f's_add_u32 s{sT0}, s{sT0}, s{sT1}')
E(f's_lshl_b32 s{sT1}, s{sW}, 11'); E(f's_add_u32 s{sT0}, s{sT0}, s{sT1}')
E(f'v_add_u32 v{vQADDR}, s{sT0}, v{vL16}')
E(f's_mov_b32 s{sGM[1]}, 0xffff0000'); E(f's_mov_b32 s{sGM[1]+1}, 0')
E(f's_mov_b32 s{sQM[1]}, 0'); E(f's_mov_b32 s{sQM[1]+1}, 0x0000ffff')
E(f's_mov_b32 s{sQM[2]}, 0'); E(f's_mov_b32 s{sQM[2]+1}, 0xffff0000')
GMASK = [None, sGM[1], sQM[1], sQM[2]]
DM = ACC; DF = ACC + 4
for i in range(8): E(f'v_mov_b32 v{DM+i}, 0')
E(f's_cmp_ge_u32 s{sW}, 4'); E('s_cbranch_scc1 L_NODW')
if not OPT['PURE']: E('s_waitcnt vmcnt(0)')
a.label('L_NODW')
stamp('dmawait')
E('s_waitcnt lgkmcnt(0)')
E(f's_add_u32 s{sTAG}, s{sTAG}, 1')
E(f'v_mov_b32 v{PUB+2}, s{sTAG}'); E(f'v_mov_b32 v{PUB+3}, s{sTAG+1}')
if OPT['PURE']:
    E(f's_cmp_ge_u32 s{sW}, 4'); E('s_cbranch_scc1 L_PURE_HI')
    issue_chunk(0, track=False)
    a.label('L_PURE_HI')
    issue_chunk(1, track=False); issue_chunk(2, track=False)
    E('s_branch L_PURE_JOIN')
E('s_barrier')
stamp('barA')
FA = A; FB = A + 10
def mfma_tile(vaddr, dreg, read_a):
    for s_ in range(5):
        if read_a: E(f'ds_read_b64 v[{FA+2*s_}:{FA+2*s_+1}], v{vAA} offset:{L_XL + 32*s_}')
        E(f'ds_read_b64_tr_b16 v[{FB+2*s_}:{FB+2*s_+1}], v{vaddr[0]} offset:{vaddr[1]*s_}')
    n = 2 if read_a else 1
    for s_ in range(5):
        E(f's_waitcnt lgkmcnt({n*(4-s_)})')
        E(f'v_mfma_f32_16x16x16_bf16 v[{dreg}:{dreg+3}], v[{FA+2*s_}:{FA+2*s_+1}], v[{FB+2*s_}:{FB+2*s_+1}], v[{dreg}:{dreg+3}]')
    E('s_nop 7'); E('s_nop 1')
    E(f'v_mov_b32 v{PUB}, v{dreg}')
    for g in (1, 2, 3):
        E(f'v_cndmask_b32 v{PUB}, v{PUB}, v{dreg+g}, s[{GMASK[g]}:{GMASK[g]+1}]')
    E(f'v_mov_b32_dpp v{PUB+1}, v{PUB} quad_perm:[1,0,3,2] row_mask:0xf bank_mask:0xf')
mfma_tile((vBA, 16*256), DM, True)
E('s_mov_b32 exec_lo, 0x55555555'); E('s_mov_b32 exec_hi, 0x55555555')
if OPT['DUAL']:
    E(f's_mov_b32 s{sT0}, {QPA}')
    E(f'buffer_store_dwordx4 v[{PUB}:{PUB+3}], v{vQP}, s[{D_WS}:{D_WS+3}], s{sT0} offen')
E(f's_mov_b32 s{sT0}, {QPB}')
E(f'buffer_store_dwordx4 v[{PUB}:{PUB+3}], v{vQP}, s[{D_WS}:{D_WS+3}], s{sT0} offen sc1')
E('s_mov_b64 exec, -1')
stamp('qpub')
nst = 2 if OPT['DUAL'] else 1
E(f's_cmp_lt_u32 s{sW}, 4'); E('s_cbranch_scc1 L_FW')
E(f's_cmp_eq_u32 s{sW}, 5'); E('s_cbranch_scc1 L_FW5')
E(f's_waitcnt vmcnt({4+nst})')
E('s_branch L_FW')
a.label('L_FW5')
E(f's_waitcnt vmcnt({8+nst})')
a.label('L_FW')
E('s_barrier')
E(f's_cmp_ge_u32 s{sH}, 27'); E('s_cbranch_scc1 L_NOFP')
mfma_tile((vFA, 16*128), DF, False)
E('s_mov_b32 exec_lo, 0x55555555'); E('s_mov_b32 exec_hi, 0x55555555')
E(f'buffer_store_dwordx4 v[{PUB}:{PUB+3}], v{vFPUB}, s[{D_WS}:{D_WS+3}], 0 offen sc1')
E('s_mov_b64 exec, -1')
a.label('L_NOFP')
stamp('fpub')
GQ0, GQ1 = G0, G1
def q_load(base):
    E(f's_mov_b32 s{sT0}, {base}')
    E(f'buffer_load_dwordx4 v[{GQ0}:{GQ0+3}], v{vQADDR}, s[{D_WS}:{D_WS+3}], s{sT0} offen sc1')
    E(f'buffer_load_dwordx4 v[{GQ1}:{GQ1+3}], v{vQADDR}, s[{D_WS}:{D_WS+3}], s{sT0} offen offset:1024 sc1')
qcmp = lambda: tagcmp([GQ0+2, GQ1+2])
QFIRST = QPA if OPT['DUAL'] else QPB
E(f's_cmp_ge_u32 s{sW}, 4'); E('s_cbranch_scc1 L_Q_NOG')
q_load(QFIRST)
issue_chunk(0, track=False)
E('s_waitcnt vmcnt(4)')
stamp('q1ret')
qcmp()
E('s_cbranch_scc1 L_Q_GOT1')
q_load(QFIRST)
issue_chunk(1, track=False)
E('s_waitcnt vmcnt(4)')
qcmp()
E('s_cbranch_scc0 L_SLOW_Q')
a.label('L_OK_Q')
issue_chunk(2, track=False)
E('s_branch L_Q_GOT2')
a.label('L_Q_GOT1')
issue_chunk(1, track=False)
issue_chunk(2, track=False)
a.label('L_Q_GOT2')
def q_reissue():
    if OPT['DUAL']:
        E(f's_and_b32 s{sT1}, s{sSPIN}, 1'); E(f's_cmp_eq_u32 s{sT1}, 1')
        E(f's_mov_b32 s{sT0}, {QPA}'); E(f's_cselect_b32 s{sT0}, {QPB}, s{sT0}')
        E(f'buffer_load_dwordx4 v[{GQ0}:{GQ0+3}], v{vQADDR}, s[{D_WS}:{D_WS+3}], s{sT0} offen sc1')
        E(f'buffer_load_dwordx4 v[{GQ1}:{GQ1+3}], v{vQADDR}, s[{D_WS}:{D_WS+3}], s{sT0} offen offset:1024 sc1')
    else: q_load(QPB)
add_slow('Q', qcmp, q_reissue)
E(f'v_lshlrev_b32 v{vt[0]}, 3, v{vLANE}'); E(f's_lshl_b32 s{sT0}, s{sW}, 10'); E(f'v_add_u32 v{vt[1]}, s{sT0}, v{vt[0]}')
E(f'ds_write_b64 v{vt[1]}, v[{GQ0}:{GQ0+1}] offset:{L_QS}')
E(f'ds_write_b64 v{vt[1]}, v[{GQ1}:{GQ1+1}] offset:{L_QS+512}')
E('s_branch L_Q_JOIN')
a.label('L_Q_NOG')
E('s_waitcnt vmcnt(0)')
issue_chunk(1, track=False)
issue_chunk(2, track=False)
E(f's_cmp_lg_u32 s{sW}, 5'); E('s_cbranch_scc1 L_Q_JOIN')
gs = vt[8]
E(f'v_mov_b32 v{gs}, 0')
for k in range(5):
    xl, xh, wl, wh = vt[0], vt[1], vt[2], vt[3]
    E(f'v_lshlrev_b32 v{xl}, 16, v{XG+k}'); E(f'v_and_b32 v{xh}, s{sMASKHI}, v{XG+k}')
    E(f'v_lshlrev_b32 v{wl}, 16, v{GWr+k}'); E(f'v_and_b32 v{wh}, s{sMASKHI}, v{GWr+k}')
    E(f'v_mul_f32 v{xl}, v{xl}, v{wl}'); E(f'v_mul_f32 v{xh}, v{xh}, v{wh}')
    E(f'v_cvt_pk_bf16_f32 v{xl}, v{xl}, v{xh}')
    E(f'v_and_b32 v{xh}, s{sMASKHI}, v{xl}'); E(f'v_lshlrev_b32 v{xl}, 16, v{xl}')
    E(f'v_add_f32 v{gs}, v{gs}, v{xl}'); E(f'v_add_f32 v{gs}, v{gs}, v{xh}')
wave_reduce('v_add_f32', gs, vt[0])
bf16r(gs, gs, vt[0])
E(f'v_mul_f32 v{gs}, 0xbfb8aa3b, v{gs}'); E(f'v_exp_f32 v{gs}, v{gs}'); E(f'v_add_f32 v{gs}, 1.0, v{gs}'); E(f'v_rcp_f32 v{gs}, v{gs}')
bf16r(vG, gs, vt[0])
E(f'v_sub_f32 v{vOMG}, 1.0, v{vG}')
bf16r(vOMG, vOMG, vt[0])
E(f'v_mov_b32 v{vt[0]}, {L_G}')
E(f'ds_write_b64 v{vt[0]}, v[{vG}:{vOMG}]')
a.label('L_Q_JOIN')
for u_ in range(3):
    for l in range(4):
        ring_ops[(u_, l)] = len(a.vm); a.vm.append((f'ring{u_}', False))
    issued.add(u_)
E(f'v_lshlrev_b32 v{vt[0]}, 3, v{vLANE}')
E('s_waitcnt lgkmcnt(0)')
E('s_barrier')
RDQ = A
for w in range(8):
    E(f'ds_read_b64 v[{RDQ+2*w}:{RDQ+2*w+1}], v{vt[0]} offset:{L_QS + w*512}')
E(f'v_mov_b32 v{vt[5]}, {L_G}'); E(f'ds_read_b64 v[{vG}:{vOMG}], v{vt[5]}')
E(f's_lshl_b32 s{sT0}, s{sW}, 8'); E(f'v_add_u32 v{vt[2]}, s{sT0}, v{vL4}')
E(f'v_and_b32 v{vt[3]}, 15, v{vLANE}'); E(f'v_lshlrev_b32 v{vt[3]}, 4, v{vt[3]}'); E(f'v_add_u32 v{vt[3]}, s{sT0}, v{vt[3]}')
E('s_waitcnt lgkmcnt(0)')
for st in (1, 2, 4):
    for w in range(0, 8, 2*st):
        for p in (0, 1):
            E(f'v_add_f32 v{RDQ+2*w+p}, v{RDQ+2*w+p}, v{RDQ+2*(w+st)+p}')
E(f'v_cvt_pk_bf16_f32 v{vt[4]}, v{RDQ}, v{RDQ+1}')
E(f'ds_write_b32 v{vt[2]}, v{vt[4]} offset:{L_QB}')
E('s_waitcnt lgkmcnt(0)')
E(f'ds_read_b128 v[{G0}:{G0+3}], v{vt[3]} offset:{L_QB}')
if OPT['PURE']: a.raw('L_PURE_JOIN:'); a.barrier_hist()
srd(D_OUT, S_OUT, S_OUT+1, 5120)
srd(D_WD, S_WD, S_WD+1, 2211840)
E(f's_mul_i32 s{sT0}, s{sH}, {128*1280}')
srd(D_WO, S_WO, S_WO+1, 163840, add=sT0)
E(f's_mul_i32 s{sWOB}, s{sW}, {16*1280}')
for cc in (1, 2, 3):
    m = (0x11111111 << cc) & 0xffffffff
    E(f's_mov_b32 s{sQM[cc]}, {m:#x}'); E(f's_mov_b32 s{sQM[cc]+1}, {m:#x}')
E(f'v_and_b32 v{vt[0]}, 15, v{vLANE}'); E(f'v_lshlrev_b32 v{vt[0]}, 4, v{vt[0]}')
E(f's_lshl_b32 s{sT0}, s{sB}, 5'); E(f's_add_u32 s{sT0}, s{sT0}, s{sH}'); E(f's_lshl_b32 s{sT0}, s{sT0}, 8'); E(f's_add_u32 s{sT0}, s{sT0}, {MLBUF}')
E(f'v_add_u32 v{vMLADDR}, s{sT0}, v{vt[0]}')
E('s_waitcnt lgkmcnt(0)')
stamp('qready')
Q = [G0, G0+1, G0+2, G0+3]
BETA = [0, 2, 1, 3]

wd_ops = []; fg_ops = []
sFG = [sO, sO+1, sO+2, sO+3]
def fg_loads(track=True):
    op = None
    for k in range(4):
        t = f'buffer_load_dwordx4 v[{FGR[k]}:{FGR[k]+3}], v{vL16}, s[{D_WS}:{D_WS+3}], s{sFG[k]} offen sc1'
        op = a.vmem(t, 'fg') if track else E(t)
    return op
def ffn2_issue():
    for k in range(4):
        E(f's_add_u32 s{sT0}, s{sJ}, {64*k}'); E(f's_lshl_b32 s{sT1}, s{sT0}, 3'); E(f's_add_u32 s{sT1}, s{sT1}, s{sW}')
        E(f's_mul_i32 s{sOFF}, s{sT1}, 1280')
        wd_ops.append(a.vmem(f'buffer_load_dwordx4 v[{A+4*k}:{A+4*k+3}], v{vL16}, s[{D_WD}:{D_WD+3}], s{sOFF} offen{pol(OPT["POL_WO"])}', 'wd'))
        wd_ops.append(a.vmem(f'buffer_load_dword v{A+16+k}, v{vL4}, s[{D_WD}:{D_WD+3}], s{sOFF} offen offset:1024{pol(OPT["POL_WO"])}', 'wd'))
        E(f's_min_u32 s{sT0}, s{sT0}, 215'); E(f's_mul_i32 s{sT1}, s{sB}, 216'); E(f's_add_u32 s{sT0}, s{sT0}, s{sT1}')
        E(f's_lshl_b32 s{sT0}, s{sT0}, 10'); E(f's_add_u32 s{sFG[k]}, s{sT0}, {FP}')
    fg_ops.append(fg_loads())
def ffn2_compute():
    a.wait_vm(fg_ops[0])
    poll_check('F', lambda: tagcmp([FGR[k]+2 for k in range(4)]), lambda: fg_loads(False))
    E(f's_bitcmp1_b32 s{sW}, 0'); E(f's_cselect_b64 vcc, -1, 0')
    r4 = [vt[0], vt[1], vt[2], vt[3]]
    for k in range(4): E(f'v_cndmask_b32 v{r4[k]}, v{FGR[k]}, v{FGR[k]+1}, vcc')
    reduce_bits345(r4, [vt[4], vt[5], vt[6], vt[7]])
    for k, m in ((1, 0x0000ff00), (2, 0x00ff0000), (3, 0xff000000)):
        E(f's_mov_b32 s{sT0}, {m:#x}'); E(f's_mov_b32 s{sT1}, 0')
        E(f'v_cndmask_b32 v{r4[0]}, v{r4[0]}, v{r4[k]}, s[{sT0}:{sT1}]')
    x = r4[0]
    bf16r(x, x, vt[4])
    E(f'v_mul_f32 v{vt[5]}, 0xbfb8aa3b, v{x}'); E(f'v_exp_f32 v{vt[5]}, v{vt[5]}'); E(f'v_add_f32 v{vt[5]}, 1.0, v{vt[5]}')
    E(f'v_rcp_f32 v{vt[5]}, v{vt[5]}'); E(f'v_mul_f32 v{vt[5]}, v{x}, v{vt[5]}')
    bf16r(vt[5], vt[5], vt[4])
    E(f'v_mov_b32_dpp v{vt[6]}, v{x} row_shl:4 row_mask:0xf bank_mask:0xf bound_ctrl:0')
    E(f'v_mul_f32 v{vt[5]}, v{vt[5]}, v{vt[6]}')
    bf16r(vt[5], vt[5], vt[4])
    E(f's_lshr_b32 s{sT0}, s{sW}, 1')
    for k in range(4):
        E(f's_add_u32 s{sT1}, s{sT0}, {8*k}')
        E(f'v_readlane_b32 s{sO+k}, v{vt[5]}, s{sT1}')
    for k in range(4):
        regs = [A+4*k, A+4*k+1, A+4*k+2, A+4*k+3, A+16+k]
        for d, r in enumerate(regs):
            E(f'v_lshlrev_b32 v{vt[0]}, 16, v{r}'); E(f'v_and_b32 v{vt[1]}, s{sMASKHI}, v{r}')
            if k == 0:
                E(f'v_mul_f32 v{ACC+2*d}, s{sO+k}, v{vt[0]}'); E(f'v_mul_f32 v{ACC+2*d+1}, s{sO+k}, v{vt[1]}')
            else:
                E(f'v_fmac_f32 v{ACC+2*d}, s{sO+k}, v{vt[0]}'); E(f'v_fmac_f32 v{ACC+2*d+1}, s{sO+k}, v{vt[1]}')
    for i in range(10): E(f'v_mul_f32 v{ACC+i}, v{ACC+i}, v{vOMG}')
wo_ops = {}
def wo_issue(rows):
    for rr in rows:
        E(f's_add_u32 s{sOFF}, s{sWOB}, {rr*1280}')
        wo_ops[(rr, 0)] = a.vmem(f'buffer_load_dwordx4 v[{WOX+4*rr}:{WOX+4*rr+3}], v{vL16}, s[{D_WO}:{D_WO+3}], s{sOFF} offen{pol(OPT["POL_WO"])}', 'wo')
        wo_ops[(rr, 1)] = a.vmem(f'buffer_load_dword v{WOD+rr}, v{vL4}, s[{D_WO}:{D_WO+3}], s{sOFF} offen offset:1024{pol(OPT["POL_WO"])}', 'wo')
WP = {}
wo_free = [WOSP]
def wo_perm(k):
    if not OPT['NOWO']: a.wait_vm(wo_ops[(2*k+1, 1)])
    for d in range(5):
        ra = WOX+4*(2*k)+d if d < 4 else WOD+2*k
        rb = WOX+4*(2*k+1)+d if d < 4 else WOD+2*k+1
        dst = wo_free.pop()
        E(f'v_perm_b32 v{dst}, v{rb}, v{ra}, s{sSELLO}')
        E(f'v_perm_b32 v{rb}, v{rb}, v{ra}, s{sSELHI}')
        WP[(k, d, 0)] = dst; WP[(k, d, 1)] = rb
        wo_free.append(ra)
def issue_one(u, l):
    d = D_K if u < 16 else D_V
    c = u % 16
    if l == 0 and c != 0: E(f's_mov_b32 s{sRF}, {c*32768}')
    so = '0' if c == 0 else f's{sRF}'
    r = RING + (u % 4)*16 + l*4
    off = f' offset:{l*1024}' if l else ''
    ring_ops[(u, l)] = a.vmem(f'buffer_load_dwordx4 v[{r}:{r+3}], v{vKOFF}, s[{d}:{d+3}], {so} offen{off}{pol(OPT["POL_KV"])}', f'ring{u}')
    if l == 3: issued.add(u)
def refill(u, l=None):
    n = u + D
    if n >= 32 or (n in issued and l != 3 and (n, 3) in ring_ops): return
    if n in issued: return
    if l is None: issue_chunk(n)
    else: issue_one(n, l)
def prio(u):
    if OPT['PRIO'] and u % 8 == 0: E(f's_setprio {3 - u//8}')

for n in range(D):
    if n not in issued: issue_chunk(n)
for c in range(16):
    u = c
    prio(u)
    a.wait_vm(ring_ops[(u, 3)])
    base = RING + (u % 4)*16
    for j in range(4 if not OPT['NOCOMP'] else 1):
        for l in range(4):
            cs = '0' if j == 0 else f'v{T+l}'
            E(f'v_dot2_f32_bf16 v{T+l}, v{base+4*l+j}, v{Q[j]}, {cs}')
    sp = OPT['SPACE']
    if not sp: refill(u)
    if sp: refill(u, 0)
    E(f'v_add_f32_dpp v{U0}, v{T}, v{T} row_ror:8 row_mask:0xf bank_mask:0x3')
    E(f'v_add_f32_dpp v{U1}, v{T+2}, v{T+2} row_ror:8 row_mask:0xf bank_mask:0x3')
    E(f'v_add_f32_dpp v{U0}, v{T+1}, v{T+1} row_ror:8 row_mask:0xf bank_mask:0xc')
    E(f'v_add_f32_dpp v{U1}, v{T+3}, v{T+3} row_ror:8 row_mask:0xf bank_mask:0xc')
    if sp: refill(u, 1)
    E(f'v_add_f32_dpp v{WW}, v{U0}, v{U0} row_half_mirror row_mask:0xf bank_mask:0x5')
    E(f'v_add_f32_dpp v{WW}, v{U1}, v{U1} row_half_mirror row_mask:0xf bank_mask:0xa')
    if sp > 1: E('s_nop 7')
    if sp: refill(u, 2)
    E(f'v_add_f32_dpp v{WW}, v{WW}, v{WW} quad_perm:[1,0,3,2] row_mask:0xf bank_mask:0xf')
    E(f'v_add_f32_dpp v{WW}, v{WW}, v{WW} quad_perm:[2,3,0,1] row_mask:0xf bank_mask:0xf')
    if sp > 1: E('s_nop 7')
    if sp: refill(u, 3)
    it, cc = c // 4, c % 4
    if cc == 0: E(f'v_mov_b32 v{S+it}, v{WW}')
    else: E(f'v_cndmask_b32 v{S+it}, v{S+it}, v{WW}, s[{sQM[cc]}:{sQM[cc]+1}]')
    if c == 0: code_prefetch(8192)
    w0 = OPT['WOC0']
    if w0 <= c < w0 + 8 and not OPT['NOWO']: wo_issue([2*(c-w0), 2*(c-w0)+1])
    if c == OPT['F2C'] and not OPT['NOFFN']: ffn2_issue()
    if c == 15 and not OPT['NOFFN']: ffn2_compute()
stamp('Kend')
for i in range(0, 4, 2): E(f'v_cvt_pk_bf16_f32 v{vt[i]}, v{S+i}, v{S+i+1}')
for i in range(0, 4, 2):
    E(f'v_lshlrev_b32 v{S+i}, 16, v{vt[i]}'); E(f'v_and_b32 v{S+i+1}, s{sMASKHI}, v{vt[i]}')
for i in range(4): E(f'v_mul_f32 v{S+i}, 0x3db504f3, v{S+i}')
for i in range(0, 4, 2): E(f'v_cvt_pk_bf16_f32 v{vt[i]}, v{S+i}, v{S+i+1}')
for i in range(0, 4, 2):
    E(f'v_lshlrev_b32 v{S+i}, 16, v{vt[i]}'); E(f'v_and_b32 v{S+i+1}, s{sMASKHI}, v{vt[i]}')
E(f'v_max_f32 v{vM}, v{S}, v{S+1}'); E(f'v_max3_f32 v{vM}, v{vM}, v{S+2}, v{S+3}')
wave_reduce('v_max_f32', vM, vt[0])
E(f's_mov_b32 s{sT0}, {LOG2E:#x}')
for i in range(4): E(f'v_sub_f32 v{S+i}, v{S+i}, v{vM}')
for i in range(4): E(f'v_mul_f32 v{S+i}, s{sT0}, v{S+i}')
for i in range(4): E(f'v_exp_f32 v{S+i}, v{S+i}')
E(f'v_add_f32 v{vLS}, v{S}, v{S+1}'); E(f'v_add_f32 v{vt[1]}, v{S+2}, v{S+3}'); E(f'v_add_f32 v{vLS}, v{vLS}, v{vt[1]}')
wave_reduce('v_add_f32', vLS, vt[0])
E(f'v_mov_b32 v{PUB}, v{vM}'); E(f'v_mov_b32 v{PUB+1}, v{vLS}')
E(f's_lshl_b32 s{sT0}, s{sB}, 5'); E(f's_add_u32 s{sT0}, s{sT0}, s{sH}'); E(f's_lshl_b32 s{sT0}, s{sT0}, 4')
E(f's_lshl_b32 s{sT1}, s{sS}, 3'); E(f's_add_u32 s{sT0}, s{sT0}, s{sT1}'); E(f's_add_u32 s{sT0}, s{sT0}, s{sW}')
E(f's_lshl_b32 s{sT0}, s{sT0}, 4'); E(f's_add_u32 s{sT0}, s{sT0}, {MLBUF}')
E(f'v_mov_b32 v{vt[0]}, 0')
E('s_mov_b64 exec, 1')
a.vmem(f'buffer_store_dwordx4 v[{PUB}:{PUB+3}], v{vt[0]}, s[{D_WS}:{D_WS+3}], s{sT0} offen sc1', 'mlpub')
E('s_mov_b64 exec, -1')
for i in range(8): E(f'v_mov_b32 v{A+i}, 0')
if OPT['NOFFN']:
    for i in range(10): E(f'v_mov_b32 v{ACC+i}, 0')

ml_op = [None]
def ml_loads(track=True):
    t = f'buffer_load_dwordx4 v[{ML}:{ML+3}], v{vMLADDR}, s[{D_WS}:{D_WS+3}], 0 offen sc1'
    return a.vmem(t, 'ml') if track else E(t)
def do_factor():
    a.wait_vm(ml_op[0])
    poll_check('ML', lambda: tagcmp([ML+2]), lambda: ml_loads(False))
    mM, mE = vt[0], vt[1]
    E(f'v_mov_b32 v{mM}, v{ML}')
    row_reduce('v_max_f32', mM)
    E(f's_mov_b32 s{sT0}, {LOG2E:#x}')
    E(f'v_sub_f32 v{mE}, v{ML}, v{mM}'); E(f'v_sub_f32 v{vFAC}, v{vM}, v{mM}')
    E(f'v_mul_f32 v{mE}, s{sT0}, v{mE}'); E(f'v_mul_f32 v{vFAC}, s{sT0}, v{vFAC}')
    E(f'v_exp_f32 v{mE}, v{mE}'); E(f'v_exp_f32 v{vFAC}, v{vFAC}')
    E(f'v_mul_f32 v{mE}, v{mE}, v{ML+1}')
    row_reduce('v_add_f32', mE)
    E(f'v_rcp_f32 v{mE}, v{mE}')
    E(f'v_mul_f32 v{vFAC}, v{vFAC}, v{vG}')
    E(f'v_mul_f32 v{vFAC}, v{vFAC}, v{mE}')
vOBW, vOBR, vRBW, vPST, vPGA = vt[8], vt[9], vt[10], vt[11], vt[13]
def tail_addrs():
    E(f'v_and_b32 v{vt[0]}, 15, v{vLANE}'); E(f'v_lshrrev_b32 v{vt[1]}, 4, v{vLANE}'); E(f'v_lshl_add_u32 v{vt[0]}, v{vt[0]}, 2, v{vt[1]}')
    E(f'v_lshlrev_b32 v{vt[0]}, 3, v{vt[0]}'); E(f's_mul_i32 s{sT0}, s{sW}, {OB_STRIDE}'); E(f'v_add_u32 v{vOBW}, s{sT0}, v{vt[0]}')
    E(f'v_lshrrev_b32 v{vt[1]}, 3, v{vLANE}'); E(f'v_mul_u32_u24 v{vt[1]}, {OB_STRIDE}, v{vt[1]}')
    E(f'v_and_b32 v{vt[2]}, 7, v{vLANE}'); E(f'v_lshl_add_u32 v{vt[1]}, v{vt[2]}, 3, v{vt[1]}')
    E(f's_lshl_b32 s{sT0}, s{sW}, 6'); E(f'v_add_u32 v{vOBR}, s{sT0}, v{vt[1]}')
    E(f'v_mul_u32_u24 v{vt[0]}, 40, v{vLANE}'); E(f's_mul_i32 s{sT0}, s{sW}, {RB_STRIDE}'); E(f'v_add_u32 v{vRBW}, s{sT0}, v{vt[0]}')
    E(f'v_mul_u32_u24 v{vt[0]}, 13108, v0'); E(f'v_lshrrev_b32 v{vt[0]}, 16, v{vt[0]}')
    E(f'v_mul_u32_u24 v{vt[1]}, 5, v{vt[0]}'); E(f'v_sub_u32 v{vt[1]}, v0, v{vt[1]}')
    E(f'v_lshlrev_b32 v{vt[0]}, 13, v{vt[0]}'); E(f'v_lshl_add_u32 v{vt[0]}, v{vt[1]}, 4, v{vt[0]}')
    E(f's_lshl_b32 s{sT0}, s{sB}, 19'); E(f's_lshl_b32 s{sT1}, s{sJ}, 7'); E(f's_add_u32 s{sT0}, s{sT0}, s{sT1}'); E(f's_add_u32 s{sT0}, s{sT0}, {PBUF}')
    E(f'v_add_u32 v{vPST}, s{sT0}, v{vt[0]}')
    E(f's_lshl_b32 s{sT0}, s{sB}, 6'); E(f's_add_u32 s{sT0}, s{sT0}, s{sJ}'); E(f's_lshl_b32 s{sT0}, s{sT0}, 13')
    E(f's_lshl_b32 s{sT1}, s{sW}, 10'); E(f's_add_u32 s{sT0}, s{sT0}, s{sT1}'); E(f's_add_u32 s{sT0}, s{sT0}, {PBUF}')
    E(f'v_add_u32 v{vPGA}, s{sT0}, v{vL16}')

for c in range(16):
    u = 16 + c
    prio(u)
    it, cc = c // 4, c % 4
    base = RING + (u % 4)*16
    fine = c >= 14
    if not fine: a.wait_vm(ring_ops[(u, 3)])
    for l in range(4):
        if fine: a.wait_vm(ring_ops[(u, l)])
        tb = TMP + (l % 2)*8
        for j in range(4 if not OPT['NOCOMP'] else 1):
            E(f'v_lshlrev_b32 v{tb+2*j}, 16, v{base+4*l+j}')
            E(f'v_and_b32 v{tb+2*j+1}, s{sMASKHI}, v{base+4*l+j}')
        if OPT['SPACE']: refill(u, l)
        elif l == 3: refill(u)
        n = 4*BETA[l] + cc
        for j in range(8 if not OPT['NOCOMP'] else 1):
            E(f'v_fmac_f32_dpp v{A+j}, v{S+it}, v{tb+j} row_newbcast:{n} row_mask:0xf bank_mask:0xf')
    if c < 8: wo_perm(c)
    if c == 8: tail_addrs()
    if c == OPT['MLC']: ml_op[0] = ml_loads()
    if c == 13 and not OPT['NOML']: do_factor()
    if c == 10 and OPT['TAILPF'] and OPT['PREFETCH_CODE']:
        E(f'v_lshlrev_b32 v{vt[0]}, 7, v{vLANE}'); E(f'v_add_u32 v{vt[0]}, L_TAIL-L_PCREF, v{vt[0]}')
        E(f'v_min_u32 v{vt[0]}, L_CODE_END-L_PCREF-4, v{vt[0]}')
        a.vmem(f'global_load_dword v{vDUM}, v{vt[0]}, s[{sPC}:{sPC+1}]', 'codepf')
stamp('Vend')
a.raw('L_TAIL:')
for i in range(8): E(f'v_mul_f32 v{A+i}, v{A+i}, v{vFAC}')
for i in range(4): E(f'v_permlane32_swap_b32 v{A+i}, v{A+4+i}')
for i in range(4): E(f'v_add_f32 v{A+i}, v{A+i}, v{A+4+i}')
for i in range(2): E(f'v_permlane16_swap_b32 v{A+i}, v{A+2+i}')
for i in range(2): E(f'v_add_f32 v{A+i}, v{A+i}, v{A+2+i}')
E(f'ds_write_b64 v{vOBW}, v[{A}:{A+1}] offset:{L_OB}')
E('s_waitcnt lgkmcnt(0)')
stamp('preT1')
E('s_barrier')
stamp('postT1')
E(f'ds_read_b64 v[{vt[2]}:{vt[3]}], v{vOBR} offset:{L_OB}')
E('s_waitcnt lgkmcnt(0)')
reduce_bits345([vt[2], vt[3]], [vt[4], vt[5]])
E(f'v_cvt_pk_bf16_f32 v{vt[2]}, v{vt[2]}, v{vt[3]}')
for k in range(8): E(f'v_readlane_b32 s{sO+k}, v{vt[2]}, {k}')
for k in range(8):
    for d in range(5):
        for par in (0, 1):
            E(f'v_dot2c_f32_bf16 v{ACC+2*d+par}, s{sO+k}, v{WP[(k, d, par)]}')
stamp('afterdot')
for d in range(5):
    E(f'ds_write_b64 v{vRBW}, v[{ACC+2*d}:{ACC+2*d+1}] offset:{L_RB+8*d}')
E(f'v_lshlrev_b32 v{vt[0]}, 3, v0')
E(f'v_mov_b32 v{ML}, 0'); E(f'v_mov_b32 v{ML+1}, 0')
sPM = sQM[1]
E(f's_mov_b32 s{sPM}, 0x1f1f1f1f'); E(f's_mov_b32 s{sPM+1}, 0x1f1f1f1f')
E('s_waitcnt lgkmcnt(0)')
E('s_barrier')
stamp('postT2')
E(f's_cmp_ge_u32 s{sW}, 5'); E('s_cbranch_scc1 L_NOPUB')
RD = TMP
for w in range(8):
    E(f'ds_read_b64 v[{RD+2*w}:{RD+2*w+1}], v{vt[0]} offset:{L_RB + w*RB_STRIDE}')
E('s_waitcnt lgkmcnt(0)')
for st in (1, 2, 4):
    for w in range(0, 8, 2*st):
        for p in (0, 1):
            dst = PUB + p if (st == 4) else RD+2*w+p
            E(f'v_add_f32 v{dst}, v{RD+2*w+p}, v{RD+2*(w+st)+p}')
a.vmem(f'buffer_store_dwordx4 v[{PUB}:{PUB+3}], v{vPST}, s[{D_WS}:{D_WS+3}], 0 offen sc1', 'ppub', optional=True)
a.label('L_NOPUB')
stamp('ppub')
def p_load():
    E(f'buffer_load_dwordx4 v[{ML}:{ML+3}], v{vPGA}, s[{D_WS}:{D_WS+3}], 0 offen sc1')
E(f's_mov_b64 exec, s[{sPM}:{sPM+1}]')
p_load()
E('s_waitcnt vmcnt(0)')
stamp('poll1')
def pcmp(): tagcmp([ML+2], lanemask=sPM)
def p_re():
    E(f's_andn2_b64 exec, s[{sPM}:{sPM+1}], vcc')
    p_load()
    E(f's_mov_b64 exec, s[{sPM}:{sPM+1}]')
poll_check('P', pcmp, p_re, sleep=0)
E('s_mov_b64 exec, -1')
stamp('pollok')
reduce_bits345([ML, ML+1], [vt[0], vt[1]])
E(f's_lshl_b32 s{sT0}, s{sW}, 6'); E(f'v_lshlrev_b32 v{vt[2]}, 3, v{vLANE}'); E(f'v_add_u32 v{vt[3]}, s{sT0}, v{vt[2]}')
E('s_mov_b64 exec, 0xff')
E(f'ds_write_b64 v{vt[3]}, v[{ML}:{ML+1}] offset:{L_FR}')
E('s_mov_b64 exec, -1')
E('s_waitcnt lgkmcnt(0)')
E('s_barrier')
stamp('postT3')
E(f's_cmp_lg_u32 s{sW}, 0'); E('s_cbranch_scc1 L_END5')
E(f'ds_read_b64 v[{ML}:{ML+1}], v{vt[2]} offset:{L_FR}')
E('s_waitcnt lgkmcnt(0)')
reduce_bits345([ML, ML+1], [vt[0], vt[1]])
E(f'v_cvt_pk_bf16_f32 v{vt[2]}, v{ML}, v{ML+1}')
E(f's_mul_i32 s{sT0}, s{sB}, 1280'); E(f's_lshl_b32 s{sT1}, s{sJ}, 4'); E(f's_add_u32 s{sT1}, s{sT1}, s{sT0}')
E(f'v_add_u32 v{vt[0]}, s{sT1}, v{vL4}')
E(f's_lshl_b32 s{sT1}, s{sJ}, 2'); E(f's_add_u32 s{sT1}, s{sT1}, s{sT0}'); E(f's_add_u32 s{sT1}, s{sT1}, 1024')
E(f'v_writelane_b32 v{vt[0]}, s{sT1}, 4')
E('s_mov_b64 exec, 0x1f')
a.vmem(f'buffer_store_dword v{vt[2]}, v{vt[0]}, s[{D_OUT}:{D_OUT+3}], 0 offen' + (' sc1' if OPT['OUTSC1'] else ''), 'out')
E('s_cmp_lg_u32 s2, 0'); E('s_cbranch_scc1 L_FIN')
E('s_mov_b64 exec, 1'); E(f'v_mov_b32 v{vt[0]}, 0')
a.vmem(f'buffer_store_dwordx2 v[{PUB+2}:{PUB+3}], v{vt[0]}, s[{D_WS}:{D_WS+3}], 0 offen sc1', 'epoch', optional=True)
a.label('L_FIN')
if OPT['DBGT']:
    E('s_memrealtime s[96:97]'); E('s_memtime s[98:99]'); E('s_waitcnt lgkmcnt(0)')
    E('s_mov_b64 exec, 1')
    E('v_mov_b32 v240, s96'); E('v_not_b32 v241, v254'); E('v_mov_b32 v242, 16')
    E(f'global_atomic_umax v242, v240, s[{S_DBG}:{S_DBG+1}]'); E(f'global_atomic_umax v242, v241, s[{S_DBG}:{S_DBG+1}] offset:4')
    E('v_sub_u32 v243, v240, v254'); E('v_mov_b32 v244, s98'); E('v_sub_u32 v244, v244, v255')
    E('s_cmp_lg_u32 s2, 0'); E('s_cbranch_scc1 L_DBG2')
    E('v_mov_b32 v242, 0')
    E(f'global_store_dword v242, v243, s[{S_DBG}:{S_DBG+1}] offset:4'); E(f'global_store_dword v242, v244, s[{S_DBG}:{S_DBG+1}] offset:8')
    a.raw('L_DBG2:'); a.barrier_hist()
stamp('end')
stamp_flush()
E('s_waitcnt vmcnt(0)')
a.raw('L_END:')
E('s_endpgm')
a.raw('L_END5:'); a.barrier_hist()
stamp('end')
stamp_flush()
E('s_endpgm')
for sp in slow_paths: sp()
a.raw('L_CODE_END:')
E('s_endpgm')
a.raw('.section .rodata,"a"'); a.raw('.p2align 6'); a.raw(f'.amdhsa_kernel {NAME}_kernel')
a.raw('  .amdhsa_next_free_vgpr 256'); a.raw('  .amdhsa_next_free_sgpr 102'); a.raw('  .amdhsa_accum_offset 256')
a.raw('  .amdhsa_group_segment_fixed_size 0'); a.raw('  .amdhsa_kernarg_size 104'); a.raw('  .amdhsa_user_sgpr_count 2')
a.raw('  .amdhsa_user_sgpr_kernarg_segment_ptr 1'); a.raw('  .amdhsa_system_sgpr_workgroup_id_x 1'); a.raw('.end_amdhsa_kernel')
out = sys.argv[1] if len(sys.argv) > 1 else 'cdna_kernels/' + NAME + '.s'
open(out, 'w').write(a.text())
print('wrote', out, 'lines', len(a.lines), 'auto nops', a.nops)
```
